```python
import torch

def _softmax(x, axis=-1):
    return torch.softmax(x, dim=axis)
def _gelu(x):
    return torch.nn.functional.gelu(x, approximate="tanh")
def _silu(x):
    return torch.nn.functional.silu(x)
def _sigmoid(x):
    return torch.sigmoid(x)
def _layernorm(x, axis=-1, eps=1e-5):
    m = x.mean(dim=axis, keepdim=True)
    v = x.var(dim=axis, keepdim=True, unbiased=False)
    return (x - m) / torch.sqrt(v + eps)
def _scatter_add(tgt, idx, src, axis=0):
    return tgt.clone().index_add_(axis, idx, src)
def _segment_sum(src, seg, n):
    out = torch.zeros((n,) + src.shape[1:], dtype=src.dtype)
    return out.index_add_(0, seg, src)
def _pad(x, pw):
    flat = tuple(v for pair in reversed(pw) for v in pair)
    return torch.nn.functional.pad(x, flat)

kernel_name = 'parallel_sum__compressed_kv_cla__glu_gated_swiglu__prompt'

def setup_inputs():

    _w = (lambda a: (lambda t: t.to(torch.bfloat16) if t.is_floating_point() else t)(torch.as_tensor(a)))
    def _A_setup():
        B, H, Sq, Sk, D, M = 1, 32, 2048, 2048, 128, 512
        Dc = 4 * D
        return {
            "x": _w((lambda *s: torch.randn(*s, dtype=torch.bfloat16) * 0.05)(B, Sq, M)),
            "c_kv": _w((lambda *s: torch.randn(*s, dtype=torch.bfloat16) * 0.4)(B, Sk, Dc)),
            "w_q": _w((lambda *s: torch.randn(*s, dtype=torch.bfloat16) * 1.6)(M, H, D) * (M ** -0.5)),
            "w_uk": _w((lambda *s: torch.randn(*s, dtype=torch.bfloat16) * 1.6)(Dc, H, D) * (Dc ** -0.5)),
            "w_uv": _w((lambda *s: torch.randn(*s, dtype=torch.bfloat16) * 0.4)(Dc, H, D) * (Dc ** -0.5)),
            "w_o": _w((lambda *s: torch.randn(*s, dtype=torch.bfloat16) * 0.4)(H, D, M) * ((H * D) ** -0.5)),
        }
    _A_in = _A_setup()

    def _B_setup():
        B, S, D, F = 1, 2048, 512, 1376
        return {
            "x": _w((lambda *s: torch.randn(*s, dtype=torch.bfloat16) * 0.05)(B, S, D)),
            "w1": _w((lambda *s: torch.randn(*s, dtype=torch.bfloat16) * 0.2)(D, F) * (2.0 / D) ** 0.5),
            "w3": _w((lambda *s: torch.randn(*s, dtype=torch.bfloat16) * 0.2)(D, F) * (2.0 / D) ** 0.5),
            "w2": _w((lambda *s: torch.randn(*s, dtype=torch.bfloat16) * 0.2)(F, D) * (2.0 / F) ** 0.5),
        }
    _B_in = _B_setup()

    return {
        "A_x": _A_in["x"],
        "A_c_kv": _A_in["c_kv"],
        "A_w_q": _A_in["w_q"],
        "A_w_uk": _A_in["w_uk"],
        "A_w_uv": _A_in["w_uv"],
        "A_w_o": _A_in["w_o"],
        "B_x": _B_in["x"],
        "B_w1": _B_in["w1"],
        "B_w3": _B_in["w3"],
        "B_w2": _B_in["w2"],
    }

def reference(A_x, A_c_kv, A_w_q, A_w_uk, A_w_uv, A_w_o, B_x, B_w1, B_w3, B_w2):
    def _A_ref(x, c_kv, w_q, w_uk, w_uv, w_o):
        B, Sq, M = x.shape[0], x.shape[1], x.shape[2]
        Sk = c_kv.shape[1]
        H, D = w_q.shape[1], w_q.shape[2]
        q = torch.einsum("bqm,mhd->bhqd", x, w_q)
        k = torch.einsum("bkc,chd->bhkd", c_kv, w_uk)
        v = torch.einsum("bkc,chd->bhkd", c_kv, w_uv)
        scores = torch.einsum("bhqd,bhkd->bhqk", q, k) * (D ** -0.5)
        off = Sk - Sq
        qi = torch.arange(Sq)[:, None]
        kj = torch.arange(Sk)[None, :]
        cmask = kj <= (qi + off)
        scores = torch.where(cmask[None, None], scores, -1e9)
        p = _softmax(scores, axis=-1)
        ctx = torch.einsum("bhqk,bhkd->bhqd", p, v)
        return torch.einsum("bhqd,hdm->bqm", ctx, w_o)

    def _B_ref(x, w1, w3, w2):
        gate = torch.einsum("bsd,df->bsf", x, w1)
        up = torch.einsum("bsd,df->bsf", x, w3)
        h = _silu(gate) * up
        out = torch.einsum("bsf,fd->bsd", h, w2)
        return out

    x = A_x
    xn = _layernorm(x, axis=-1)
    return x + _A_ref(xn, A_c_kv, A_w_q, A_w_uk, A_w_uv, A_w_o) + _B_ref(xn, B_w1, B_w3, B_w2)
```

```python
import re

def regs_of(tok):
    tok = tok.strip()
    neg = tok.startswith('-')
    if neg: tok = tok[1:]
    m = re.fullmatch(r'abs\((.*)\)', tok)
    if m: tok = m.group(1)
    m = re.fullmatch(r'([vas])\[(\d+):(\d+)\]', tok)
    if m:
        return [f"{m.group(1)}{i}" for i in range(int(m.group(2)), int(m.group(3)) + 1)]
    m = re.fullmatch(r'([vas])(\d+)', tok)
    if m: return [tok]
    if tok in ('vcc',): return ['vcc']
    if tok in ('exec',): return ['exec']
    if tok in ('m0', 'scc'): return [tok]
    return []

def split_ops(s):
    out, depth, cur = [], 0, ''
    for ch in s:
        if ch == '[' or ch == '(': depth += 1
        if ch == ']' or ch == ')': depth -= 1
        if ch == ',' and depth == 0:
            out.append(cur.strip()); cur = ''
        else: cur += ch
    if cur.strip(): out.append(cur.strip())
    return out

TRANS = ('v_exp_f32', 'v_log_f32', 'v_rcp_f32', 'v_rsq_f32', 'v_sqrt_f32')

class I:
    __slots__ = ('text', 'op', 'kind', 'rd', 'wr', 'tag', 'note')
    def __init__(self, text, tag=None):
        self.text = text; self.tag = tag
        t = text.split(';')[0].strip()
        if t.endswith(':') or t.startswith('.'):
            self.op = t; self.kind = 'label' if t.endswith(':') else 'directive'; self.rd = []; self.wr = []; return
        parts = t.split(None, 1)
        op = parts[0]; self.op = op
        rest = parts[1] if len(parts) > 1 else ''
        ops = split_ops(rest)
        if ops:
            last = ops[-1].split()
            ops[-1] = last[0] if last else ''
            mods = last[1:]
        else: mods = []
        R = lambda k: regs_of(ops[k]) if k < len(ops) else []
        rd, wr = [], []
        if op.startswith('v_mfma'):
            self.kind = 'mfma'; wr = R(0); rd = R(1) + R(2) + R(3)
        elif op.startswith('ds_read'):
            self.kind = 'ds_read'; wr = R(0); rd = R(1)
        elif op.startswith('ds_write'):
            self.kind = 'ds_write'; rd = R(0) + R(1) + R(2)
        elif op.startswith('ds_bpermute') or op.startswith('ds_permute'):
            self.kind = 'ds_read'; wr = R(0); rd = R(1) + R(2)
        elif op.startswith('ds_swizzle'):
            self.kind = 'ds_read'; wr = R(0); rd = R(1)
        elif op.startswith('global_load_lds'):
            self.kind = 'dma'; rd = R(0) + R(1) + ['m0']
        elif op.startswith('global_load'):
            self.kind = 'vload'; wr = R(0); rd = R(1) + R(2)
        elif op.startswith('global_store'):
            self.kind = 'vstore'; rd = R(0) + R(1) + R(2)
        elif op.startswith('global_atomic'):
            self.kind = 'vstore'
            if 'sc0' in mods: wr = R(0); rd = R(1) + R(2) + R(3)
            else: rd = R(0) + R(1) + R(2)
        elif op.startswith('buffer_load'):
            if 'lds' in mods or (ops and ops[-1] == 'lds'):
                self.kind = 'dma'; rd = R(0) + R(1) + R(2) + ['m0']
            else:
                self.kind = 'vload'; wr = R(0); rd = R(1) + R(2) + R(3)
        elif op.startswith('buffer_store'):
            self.kind = 'vstore'; rd = R(0) + R(1) + R(2) + R(3)
        elif op in ('buffer_inv', 'buffer_wbl2'):
            self.kind = 'vstore'
        elif op.startswith('s_load'):
            self.kind = 'smem'; wr = R(0); rd = R(1)
        elif op in ('s_memtime', 's_memrealtime'):
            self.kind = 'smem'; wr = R(0)
        elif op == 's_waitcnt':
            self.kind = 'wait'
        elif op == 's_barrier':
            self.kind = 'barrier'
        elif op == 's_nop':
            self.kind = 'nop'
        elif op in ('s_endpgm', 's_sleep', 's_setprio'):
            self.kind = 'misc'
        elif op.startswith('s_cbranch') or op == 's_branch':
            self.kind = 'branch'
            if 'scc' in op: rd = ['scc']
            if 'vcc' in op: rd = ['vcc']
            if 'exec' in op: rd = ['exec']
        elif op.startswith('s_cmp') or op.startswith('s_bitcmp'):
            self.kind = 'salu'; rd = R(0) + R(1); wr = ['scc']
        elif op.startswith('s_'):
            self.kind = 'salu'; wr = R(0); rd = []
            for k in range(1, len(ops)): rd += R(k)
            if op in ('s_addc_u32', 's_subb_u32', 's_cselect_b32', 's_cselect_b64'): rd += ['scc']
            if op.split('_')[1] in ('add', 'addc', 'sub', 'subb', 'and', 'or', 'xor', 'lshl', 'lshr', 'andn2', 'min', 'max', 'addk', 'not', 'ashr', 'bfe', 'lshl1', 'lshl2', 'lshl3', 'lshl4'):
                wr = wr + ['scc']
            if op in ('s_addk_i32', 's_mulk_i32'): rd += R(0)
            if 'saveexec' in op: wr = wr + ['exec']; rd += ['exec']
            if op in ('s_getreg_b32',): rd = []
            if op == 's_setpc_b64': wr = []; rd = R(0); self.kind = 'branch'
        elif op.startswith('v_cmp'):
            self.kind = 'valu'; wr = R(0); rd = R(1) + R(2)
        elif op.startswith('v_'):
            self.kind = 'trans' if op.replace('_e32', '').replace('_e64', '') in TRANS else 'valu'
            wr = R(0); rd = []
            start = 1
            if op.startswith(('v_add_co', 'v_sub_co', 'v_addc_co', 'v_subb_co')):
                wr = R(0) + R(1); start = 2
            for k in range(start, len(ops)): rd += R(k)
            if op.startswith(('v_fmac', 'v_mac', 'v_dot2c', 'v_writelane')): rd += R(0)
            if op.startswith('v_permlane') and 'swap' in op:
                wr = R(0) + R(1); rd = R(0) + R(1)
            if op.startswith('v_cndmask') and len(ops) == 3: rd += ['vcc']
            if 'dpp' in op or any(m.startswith(('quad_perm', 'row_', 'wave_')) for m in mods):
                self.note = 'dpp'
                rd += R(0) if 'bound_ctrl:0' not in mods and 'bound_ctrl:1' not in mods else []
        else:
            raise ValueError("unknown op " + text)
        self.rd = rd; self.wr = wr

def is_dpp(i):
    return ('quad_perm' in i.text or 'row_' in i.text or 'wave_' in i.text or '_dpp' in i.op) and i.op.startswith('v_') and not i.op.startswith('v_mfma')

class Prog:
    def __init__(self):
        self.ins = []
    def e(self, text, tag=None):
        for ln in text.split('\n'):
            ln = ln.strip()
            if ln and not ln.startswith(';'):
                self.ins.append(I(ln, tag))
        return self
    def ext(self, L):
        for x in L:
            if isinstance(x, I): self.ins.append(x)
            else: self.e(x)
    def text(self):
        out = []
        for i in self.ins:
            out.append(i.text if i.kind in ('label', 'directive') else '  ' + i.text)
        return '\n'.join(out) + '\n'

VALU = ('valu', 'trans')
def mfma_passes(op):
    if '32x32x16' in op: return 8
    if '16x16x32' in op: return 4
    raise ValueError(op)

def check_hazards(ins, name=''):
    probs = []
    real = [i for i in ins if i.kind not in ('label', 'directive')]
    n = len(real)
    pos = []; p = 0
    for i in real:
        pos.append(p)
        if i.kind == 'nop':
            p += int(i.text.split()[1], 0) + 1
        else: p += 1
    last_mfma_wr = {}
    last_mfma_srcc = {}
    last_valu_wr = {}
    last_trans_wr = {}
    last_valu_sgpr = {}
    last_store_data = {}
    last_salu_m0 = None
    last_valu_exec = None
    for k, i in enumerate(real):
        def dist(j): return pos[k] - pos[j] - (int(real[j].text.split()[1], 0) + 1 if real[j].kind == 'nop' else 1)
        def need(j, d, why):
            if dist(j) < d:
                probs.append(f"{name}: [{why}] need {d} have {dist(j)}:\n    {real[j].text}\n    {i.text}")
        if i.kind == 'mfma':
            ops = split_ops(i.text.split(None, 1)[1])
            D = regs_of(ops[0]); A = regs_of(ops[1]); B = regs_of(ops[2]); C = regs_of(ops[3].split()[0])
            for r in A + B:
                if r in last_mfma_wr: need(last_mfma_wr[r], 8 if mfma_passes(real[last_mfma_wr[r]].op) == 4 else 12, 'mfma D->A/B')
            for r in A + B + C:
                if r in last_valu_wr: need(last_valu_wr[r], 2, 'valu->mfma')
            for r in C:
                if r in last_mfma_wr:
                    j = last_mfma_wr[r]; oj = split_ops(real[j].text.split(None, 1)[1])
                    if regs_of(oj[0]) != C: need(j, 6, 'mfma D->C overlap')
            for r in D:
                if r in last_mfma_wr and r not in C:
                    need(last_mfma_wr[r], 6, 'mfma WAW')
            if last_valu_exec is not None: need(last_valu_exec, 4, 'exec->mfma')
        else:
            touched_rd = i.rd
            for r in touched_rd:
                if r in last_mfma_wr and i.kind in VALU + ('ds_write', 'vstore', 'vload', 'dma', 'ds_read'):
                    need(last_mfma_wr[r], 8 if mfma_passes(real[last_mfma_wr[r]].op) == 4 else 12, 'mfma D->read')
            for r in i.wr:
                if r in last_mfma_wr and i.kind in VALU + ('ds_read', 'vload'):
                    need(last_mfma_wr[r], 8 if mfma_passes(real[last_mfma_wr[r]].op) == 4 else 12, 'mfma D->write')
                if r in last_mfma_srcc and i.kind in VALU:
                    need(last_mfma_srcc[r], 3 if mfma_passes(real[last_mfma_srcc[r]].op) == 4 else 7, 'mfma C WAR')
                if r in last_store_data and i.kind in VALU:
                    need(last_store_data[r], 2, 'store data WAR')
        if i.kind in VALU:
            for r in i.rd:
                if r in last_trans_wr and i.kind == 'valu': need(last_trans_wr[r], 1, 'trans->valu')
                if r in last_valu_sgpr and not i.op.startswith(('v_readlane', 'v_writelane')): need(last_valu_sgpr[r], 2, 'valu sgpr->valu')
                if is_dpp(i) and r in last_valu_wr: need(last_valu_wr[r], 2, 'valu->dpp')
                if i.op.startswith('v_permlane') and r in last_valu_wr: need(last_valu_wr[r], 2, 'valu->permlane')
                if i.op.startswith(('v_readlane', 'v_readfirstlane')) and r in last_valu_wr: need(last_valu_wr[r], 1, 'valu->readlane')
        if i.kind in ('vload', 'vstore', 'dma'):
            for r in i.rd:
                if r in last_valu_sgpr: need(last_valu_sgpr[r], 5, 'valu sgpr->vmem')
            if i.kind == 'dma' and last_salu_m0 is not None: need(last_salu_m0, 1, 'm0->dma')
        if i.kind in ('ds_write', 'vstore', 'vload', 'dma', 'ds_read'):
            for r in i.rd:
                if r in last_trans_wr: need(last_trans_wr[r], 1, 'trans->mem')
        if i.kind == 'salu' or i.kind == 'branch':
            for r in i.rd:
                if r in last_valu_sgpr and r != 'exec': need(last_valu_sgpr[r], 1 if i.kind == 'salu' else 5, 'valu sgpr->salu (conservative)')
        if i.kind == 'mfma':
            ops = split_ops(i.text.split(None, 1)[1])
            for r in regs_of(ops[0]): last_mfma_wr[r] = k
            for r in regs_of(ops[3].split()[0]): last_mfma_srcc[r] = k
            for r in regs_of(ops[0]):
                last_valu_wr.pop(r, None); last_trans_wr.pop(r, None)
        else:
            for r in i.wr:
                last_mfma_wr.pop(r, None) if i.kind in VALU + ('ds_read', 'vload') else None
                if i.kind in VALU:
                    if r[0] in 'va' and r not in ('vcc',): last_valu_wr[r] = k
                    else: last_valu_sgpr[r] = k
                    if r == 'exec': last_valu_exec = k
                    if i.kind == 'trans': last_trans_wr[r] = k
                    else: last_trans_wr.pop(r, None)
                else:
                    last_valu_wr.pop(r, None); last_trans_wr.pop(r, None); last_valu_sgpr.pop(r, None)
                if i.kind == 'salu' and r == 'm0': last_salu_m0 = k
            if i.kind == 'vstore' and ('x4' in i.op or 'x3' in i.op):
                ops = split_ops(i.text.split(None, 1)[1])
                data = regs_of(ops[1]) if i.op.startswith('global') else regs_of(ops[0])
                for r in data: last_store_data[r] = k
    return probs

def check_scc(ins, name=''):
    probs = []; last = None
    for i in ins:
        if i.kind in ('label', 'directive'): continue
        if 'scc' in i.rd:
            ok = False
            if last is not None:
                if i.op == 's_addc_u32': ok = last.op == 's_add_u32' and regs_of(split_ops(last.text.split(None,1)[1])[0])[0][1:] == str(int(regs_of(split_ops(i.text.split(None,1)[1])[0])[0][1:]) - 1)
                elif i.op == 's_subb_u32': ok = last.op == 's_sub_u32'
                else: ok = last.op.startswith(('s_cmp', 's_bitcmp'))
            if not ok: probs.append(f"{name}: [scc] {last.text if last else None} -> {i.text}")
        if 'scc' in i.wr: last = i
    return probs

def check_m0(ins, name=''):
    probs = []; fresh = False; prev = None
    for i in ins:
        if 'm0' in i.wr: fresh = True
        if i.kind == 'dma':
            if not fresh:
                same = prev is not None and prev.tag == i.tag and prev.rd == i.rd
                if not same: probs.append(f"{name}: [m0 stale] {prev.text if prev else None} -> {i.text}")
            fresh = False; prev = i
    return probs

def parse_wait(text):
    vm = re.search(r'vmcnt\((\d+)\)', text); lg = re.search(r'lgkmcnt\((\d+)\)', text)
    return (int(vm.group(1)) if vm else None, int(lg.group(1)) if lg else None)

def check_waits(ins, name=''):
    probs = []
    vm_q = []
    lg_q = []
    for i in ins:
        if i.kind in ('label', 'directive'): continue
        if i.kind == 'wait':
            vm, lg = parse_wait(i.text)
            if vm is not None:
                while len(vm_q) > vm: vm_q.pop(0)
            if lg is not None:
                if any(x[0].kind == 'smem' for x in lg_q):
                    if lg == 0: lg_q.clear()
                else:
                    while len(lg_q) > lg: lg_q.pop(0)
            continue
        touched = set(i.rd) | set(i.wr)
        for q, nm in ((vm_q, 'vm'), (lg_q, 'lgkm')):
            for (j, regs) in q:
                hit = touched & regs
                if hit and not (j is i):
                    if set(i.rd) & regs or i.kind not in ('ds_read', 'vload') or (i.kind == 'ds_read') != (j.kind == 'ds_read'):
                        probs.append(f"{name}: [{nm} not waited] {sorted(hit)[:4]}\n    {j.text}\n    {i.text}")
        if i.kind in ('vload', 'vstore', 'dma'):
            vm_q.append((i, set(i.wr)))
            if len(vm_q) > 63: pass
        if i.kind in ('ds_read', 'ds_write', 'smem'):
            lg_q.append((i, set(i.wr)))
    return probs

class VmTracker:
    def __init__(self): self.ops = []
    def issue(self, tag): self.ops.append(tag)
    def count_after(self, tag):
        for k in range(len(self.ops) - 1, -1, -1):
            if self.ops[k] == tag: return len(self.ops) - 1 - k
        raise KeyError(tag)

def auto_waits(ins):
    vm, lg = [], []
    for i in ins:
        if i.kind in ('vload', 'vstore', 'dma'): vm.append(i.tag)
        elif i.kind in ('ds_read', 'ds_write'): lg.append(i.tag)
        elif i.kind == 'wait' and i.tag is not None:
            want = i.tag
            parts = []
            for nm, q, mx in (('vm', vm, 63), ('lg', lg, 15)):
                if nm in want:
                    tags = want[nm]
                    if tags == 0 or tags is True:
                        n = 0
                    else:
                        if not isinstance(tags, (list, tuple, set)): tags = [tags]
                        idx = [k for k, t in enumerate(q) if t in tags]
                        if not idx:
                            continue
                        n = len(q) - 1 - max(idx)
                    if n > mx: n = mx
                    parts.append(('vmcnt' if nm == 'vm' else 'lgkmcnt') + f"({n})")
                    if n == mx and tags not in (0, True):
                        real_n = len(q) - 1 - max(idx)
                        if real_n > mx and nm == 'lg':
                            pass
            i.text = 's_waitcnt ' + ' '.join(parts) if parts else 's_nop 0'
            if not parts: i.kind = 'nop'
    return ins

def W(vm=None, lg=None):
    t = {}
    if vm is not None: t['vm'] = vm
    if lg is not None: t['lg'] = lg
    i = I('s_waitcnt vmcnt(0)', tag=t)
    return i
```

```python
from common import *

V_LANE = 1
V_KVR  = 2
V_L16  = 4
V_NEGM = 56
V_L    = 60
V_S    = 64
V_P    = 80
V_BIG  = 88
V_T    = 89
V_CI   = 96
V_O    = 128
A_Q, A_K, A_V = 0, 64, 128
def O(db, slot): return V_O + (db * 4 + slot) * 4
def CI(slot, kb): return V_CI + slot * 8 + kb * 4
def QF(slot, t): return A_Q + (slot * 4 + t) * 4
def KF(buf, kb, t): return A_K + buf * 32 + (kb * 4 + t) * 4
def VF(buf, db): return A_V + buf * 32 + db * 4
def Sreg(q, kb): return V_S + (q & 1) * 8 + kb * 4
def Preg(q): return V_P + (q & 1) * 4

KVBUF0 = 98304
KVXOR = 0x10000

S_W = 22
S_KVG = 34
S_KVM0 = 36
S_DT = 38
S_MASK = 44
S_CNT = 52

def softmax_instrs(q, slot):
    regs = [Sreg(q, kb) + r for kb in range(2) for r in range(4)]
    ex = [f"v_exp_f32 v{r}, v{r}" for r in regs]
    ad = [f"v_add_f32 v{V_L+slot}, v{V_L+slot}, v{r}" for r in regs]
    cv = [f"v_cvt_pk_bf16_f32 v{Preg(q)+k}, v{regs[2*k]}, v{regs[2*k+1]}" for k in range(4)]
    return ex, ad, cv

def qk_group(st, q, slot, kbuf):
    g0 = None
    for kb in range(2):
        for t in range(4):
            d = vr(Sreg(q, kb))
            c = vr(CI(slot, kb)) if t == 0 else d
            g = st.mfma(f"{MF} {d}, {ar(KF(kbuf, kb, t))}, {ar(QF(slot, t))}, {c}")
            if g0 is None: g0 = g
    return g0

def pv_group(st, q, slot, vbuf):
    for db in range(8):
        o = vr(O(db, slot))
        st.mfma(f"{MF} {o}, {ar(VF(vbuf, db))}, {vr(Preg(q))}, {o}")

def kv_reads(step_in_stage, buf):
    base = step_in_stage * 16384
    K = [I(f"ds_read_b128 {ar(KF(buf, kb, t))}, v{V_KVR} offset:{base + (kb*4+t)*1024}", tag=('K', buf)) for kb in range(2) for t in range(4)]
    V = [I(f"ds_read_b128 {ar(VF(buf, db))}, v{V_KVR} offset:{base + 8192 + db*1024}", tag=('V', buf)) for db in range(8)]
    return K, V

def dma_burst(j):
    sc = [f"s_add_u32 s{S_DT}, s{S_KVG}, {j*16384}", f"s_addc_u32 s{S_DT+1}, s{S_KVG+1}, 0", f"s_add_u32 m0, s{S_KVM0}, {j*16384}"]
    d = [I(f"global_load_lds_dwordx4 v{V_L16}, {sr(S_DT)} offset:{k*1024} SC", tag='KVD') for k in range(4)]
    return sc, d

def mask_hook(slots, j, lab):
    e, o = slots
    L = [f"s_cmp_eq_u32 s{S_W}, {j}", f"s_cbranch_scc0 {lab}_a"]
    for r in range(4):
        L.append(f"v_cndmask_b32 v{CI(e,0)+r}, v{V_BIG}, v{V_NEGM+e}, s[{S_MASK+2*r}:{S_MASK+2*r+1}]")
    for r in range(4): L.append(f"v_mov_b32 v{CI(e,1)+r}, v{V_BIG}")
    for r in range(4):
        L.append(f"v_cndmask_b32 v{CI(o,1)+r}, v{V_BIG}, v{V_NEGM+o}, s[{S_MASK+2*r}:{S_MASK+2*r+1}]")
    L.append(f"{lab}_a:")
    if j >= 1:
        L += [f"s_cmp_eq_u32 s{S_W}, {j-1}", f"s_cbranch_scc0 {lab}_b"]
        for r in range(4): L.append(f"v_mov_b32 v{CI(e,0)+r}, v{V_BIG}")
        for r in range(4): L.append(f"v_mov_b32 v{CI(o,0)+r}, v{V_BIG}")
        for r in range(4): L.append(f"v_mov_b32 v{CI(o,1)+r}, v{V_BIG}")
        L.append(f"{lab}_b:")
    L.append("s_nop 1")
    return L

def stage_body(nq, diag_slots, lab, sc_kv="", prefetch=True):
    st = Stream(cap=2)
    G = 8 * 2 * nq
    soft = []
    for j in range(4):
        buf = j & 1
        for q in range(nq):
            g0 = qk_group(st, q, q, buf)
            soft.append((g0, q, q))
            pq = (q - 1) % nq
            pv_group(st, pq, pq, (j - 1) & 1 if q == 0 else buf)
    n = len(st.spine)
    pend = {}
    for (g0, q, slot) in soft:
        ex, ad, cv = softmax_instrs(q, slot)
        for k in range(8):
            pend.setdefault((g0 + 7 + 2*k) % n, []).append(('e', ex[k]))
            pend.setdefault((g0 + 8 + 2*k) % n, []).append(('a', ad[k]))
        for k in range(4):
            pend.setdefault((g0 + 10 + 4*k) % n, []).append(('c', cv[k]))
    for j in range(4):
        K, V = kv_reads((j + 1) % 4, (j + 1) & 1)
        R = K + V
        if nq == 4: gaps = [j*G + 4*k for k in range(16)]
        else: gaps = [j*G + 2*k for k in range(16)]
        for r, g in zip(R, gaps): pend.setdefault(g, []).append(('r', r))
    order = {'r': 0, 'c': 1, 'e': 2, 'a': 3}
    pre = {g: [] for g in range(n)}
    for j in range(4):
        pre[j*G + G - 1].append(W(lg=[('K', (j + 1) & 1)]))
        pre[j*G + 23].append(W(lg=[('V', j & 1)]))
    g3 = 3 * G
    switch = [W(vm=True, lg=True), I("s_barrier"), I(f"v_xor_b32 v{V_KVR}, {KVXOR}, v{V_KVR}")]
    bursts = {}
    if prefetch:
        for j in range(4):
            g = g3 + 4 + j * (G // 4)
            bursts[g] = j
            scs, _ = dma_burst(j)
            for k in range(3):
                assert not pre[g - 3 + k]
                pre[g - 3 + k].append(I(scs[k]))
    out = []
    for g in range(n):
        j, gi = divmod(g, G)
        out.append(st.spine[g])
        items = sorted(pend.get(g, []), key=lambda t: order[t[0]])
        body = [x if isinstance(x, I) else I(x) for _, x in items]
        if g == g3 - 1:
            body = body + switch
        head = list(pre[g])
        if g in bursts:
            _, ds = dma_burst(bursts[g])
            ds = [I(d.text.replace('SC', sc_kv).strip(), tag=d.tag) for d in ds]
            head += [I(f"s_cmp_lg_u32 s{S_CNT}, 0"), I(f"s_cbranch_scc0 {lab}_nb{bursts[g]}")] + ds + [I(f"{lab}_nb{bursts[g]}:")]
        out += head + body
        if diag_slots is not None and nq == 4 and gi == 0:
            out += [I(x) for x in mask_hook(diag_slots, j, f"{lab}_m{j}")]
        if diag_slots is not None and nq == 2 and gi == G - 1 and j < 3:
            out += [I(x) for x in mask_hook(diag_slots, j + 1, f"{lab}_m{j+1}")]
    if prefetch:
        out += [I(f"s_add_u32 s{S_KVG}, s{S_KVG}, 65536"), I(f"s_addc_u32 s{S_KVG+1}, s{S_KVG+1}, 0"),
                I(f"s_xor_b32 s{S_KVM0}, s{S_KVM0}, {KVXOR}"),
                I(f"s_max_u32 s{S_CNT}, s{S_CNT}, 1"), I(f"s_sub_u32 s{S_CNT}, s{S_CNT}, 1")]
    return out

def resolve_loop(body):
    import copy
    a = [copy.copy(i) for i in body]
    b = body
    auto_waits(a + b)
    return body

def tail(nq):
    q = nq - 1
    ex, ad, cv = softmax_instrs(q, q)
    L = ["s_nop 0", ad[4], ex[5], "s_nop 0", cv[2], ad[5], ex[6], "s_nop 0", ad[6], ex[7], "s_nop 0", cv[3], ad[7], "s_nop 1"]
    out = [I(x) for x in L]
    out.append(W(lg=True))
    for db in range(8):
        o = vr(O(db, q))
        out.append(I(f"{MF} {o}, {ar(VF(1, db))}, {vr(Preg(q))}, {o}"))
    return out
```

```python
import sys
sys.path.insert(0, 'gen')
from common import *

def assemble_file(kernels):
    hdr = "; generated by gen/build.py\n"
    for (name, code, desc, grid, block, lds) in kernels:
        hdr += f"; @launch kernel={name} grid=({grid},1,1) block=({block},1,1) lds={lds}\n"
    txt = hdr + HEADER
    for k in kernels: txt += k[1] + "\n"
    txt += '.section .rodata,"a"\n'
    for k in kernels: txt += ".p2align 6\n" + k[2]
    return txt
```

```python
from asmlib import *
from sched import Stream

NAME = "parallel_sum__compressed_kv_cla__glu_gated_swiglu__prompt"
KA = dict(x=0, ckv=8, wq=16, wuk=24, wuv=32, wo=40, bx=48, w1=56, w3=64, w2=72, out=80, dbg=88, ws=96)
WS_XN   = 0x0000000
WS_KV   = 0x0200000
WS_H    = 0x2200000
WS_CTX  = 0x2800000
WS_PART = 0x3800000
WS_FLAG = 0x5800000

MF = "v_mfma_f32_16x16x32_bf16"
def vr(a, n=4, f='v'): return f"{f}[{a}:{a+n-1}]"
def ar(a, n=4): return vr(a, n, 'a')
def sr(a, n=2): return f"s[{a}:{a+n-1}]"

def add64(p, dst, src, imm):
    p.e(f"s_add_u32 s{dst}, s{src}, {imm}")
    p.e(f"s_addc_u32 s{dst+1}, s{src+1}, 0")

def add64s(p, dst, src, sreg):
    p.e(f"s_add_u32 s{dst}, s{src}, s{sreg}")
    p.e(f"s_addc_u32 s{dst+1}, s{src+1}, 0")

HEADER = """.amdgcn_target "amdgcn-amd-amdhsa--gfx950"
.text
"""
def kernel_open(name):
    return f""".globl {name}
.p2align 8
.type {name},@function
{name}:
"""
def kernel_desc(name, nv, ao, ns=100):
    return f""".amdhsa_kernel {name}
  .amdhsa_next_free_vgpr {nv}
  .amdhsa_next_free_sgpr {ns}
  .amdhsa_accum_offset {ao}
  .amdhsa_group_segment_fixed_size 0
  .amdhsa_kernarg_size 104
  .amdhsa_user_sgpr_count 2
  .amdhsa_user_sgpr_kernarg_segment_ptr 1
  .amdhsa_system_sgpr_workgroup_id_x 1
.end_amdhsa_kernel
"""

def wg_decode(p, s_h, s_j, s_w, v_lane):
    p.e(f"""
    s_and_b32 s{s_h}, s2, 7
    s_lshl_b32 s{s_h}, s{s_h}, 2
    s_lshr_b32 s{s_j}, s2, 3
    s_and_b32 s{s_j}, s{s_j}, 3
    s_add_u32 s{s_h}, s{s_h}, s{s_j}
    s_lshr_b32 s{s_j}, s2, 5
    v_lshrrev_b32 v{v_lane}, 6, v0
    s_nop 0
    v_readfirstlane_b32 s{s_w}, v{v_lane}
    v_and_b32 v{v_lane}, 63, v0
    """)

def check(prog, name):
    ins = auto_waits(prog.ins)
    pr = check_hazards(ins, name) + check_waits(ins, name) + check_scc(ins, name) + check_m0(ins, name)
    if pr:
        print("\n".join(pr[:40]))
        raise SystemExit(f"{len(pr)} problems in {name}")

STAMP = False
WS_STAMP = 0x6000000
S_STAMP0 = 64
class Stamps:
    cyc = False
    def __init__(self): self.n = 0
    def instr(self):
        k = self.n; self.n += 1
        return f"{'s_memtime' if Stamps.cyc else 's_memrealtime'} s[{S_STAMP0+2*k}:{S_STAMP0+2*k+1}]"
    def dump(self, p, s_ws_pair_src_offset, kernel_idx):
        p.e(f"""
        s_waitcnt lgkmcnt(0)
        s_load_dwordx2 s[60:61], s[0:1], {KA['ws']}
        v_lshrrev_b32 v2, 6, v0
        s_lshl_b32 s62, s2, 2
        v_add_u32 v2, s62, v2
        v_lshlrev_b32 v2, 6, v2
        v_add_u32 v2, {WS_STAMP + kernel_idx*65536}, v2
        s_waitcnt lgkmcnt(0)
        """)
        for k in range(self.n):
            p.e(f"v_mov_b32 v3, s{S_STAMP0+2*k}")
            p.e(f"global_store_dword v2, v3, s[60:61] offset:{4*k}")
        p.e("s_waitcnt vmcnt(0)")
```

```python
import proj
from proj import Chunk, ProjStream, setup_tr_addr, setup_w_voff, xfrag
import attn as A
from common import *

S_XN, S_W1, S_W3, S_WQ, S_WS = 4, 6, 8, 10, 12
S_HB = 14
S_CX = 16
S_H, S_P, S_W = 20, 21, 22
S_M0W = 23
S_TMP = 24
S_ST = 28
S_NU = 32
S_U0 = 33
S_QB = 56
S_LOOP = 53
QSCALE = 1.4426950408889634 / (128 ** 0.5)
V_XOFF = 48
V_HOFF = 52
V_TMP4 = 56
V_STG = proj.V_STG

def f32hex(x):
    import struct
    return hex(struct.unpack('<I', struct.pack('<f', x))[0])

def att_setup(p):
    p.e(f"""
    s_load_dwordx2 {sr(S_WS)}, s[0:1], {KA['ws']}
    s_load_dwordx2 {sr(S_W1)}, s[0:1], {KA['w1']}
    s_load_dwordx2 {sr(S_W3)}, s[0:1], {KA['w3']}
    s_load_dwordx2 {sr(S_WQ)}, s[0:1], {KA['wq']}
    """)
    wg_decode(p, S_H, S_P, S_W, proj.V_LANE)
    vl = proj.V_LANE
    p.e(f"v_lshlrev_b32 v{proj.V_ST}, 4, v{vl}")
    p.e(f"""
    s_mul_i32 s{S_U0}, s{S_H}, 3
    s_lshl_b32 s40, s{S_H}, 1
    s_add_u32 s40, s40, 22
    s_cmp_lt_u32 s{S_H}, 22
    s_cselect_b32 s{S_U0}, s{S_U0}, s40
    s_cselect_b32 s{S_NU}, 5, 3
    """)
    setup_tr_addr(p, vl, proj.V_TR, 60, 61, 62, 'nat')
    setup_w_voff(p, proj.V_OFFW, vl, S_W, 8192, 60, 61, 40)
    setup_w_voff(p, proj.V_OFFF, vl, S_W, 2752, 60, 61, 40, clamp_pieces=S_NU)
    p.e(f"""
    s_sub_u32 s40, 15, s{S_P}
    s_lshl_b32 s40, s40, 3
    s_lshl_b32 s41, s{S_W}, 1
    s_add_u32 s{S_QB}, s40, s41
    s_add_u32 s{S_QB+1}, s{S_QB}, 1
    s_lshl_b32 s40, s{S_P}, 3
    s_add_u32 s{S_QB+2}, s40, s41
    s_add_u32 s{S_QB+3}, s{S_QB+2}, 1
    s_lshl_b32 s{S_M0W}, s{S_W}, 10
    """)
    for b in range(4):
        p.e(f"""
        s_lshl_b32 s40, s{S_QB+b}, 14
        v_add_u32 v{V_XOFF+b}, s40, v{proj.V_ST}
        s_mul_i32 s40, s{S_QB+b}, {86*512}
        v_lshlrev_b32 v{V_HOFF+b}, 3, v{vl}
        v_add_u32 v{V_HOFF+b}, s40, v{V_HOFF+b}
        """)
    p.e("s_waitcnt lgkmcnt(0)")
    add64(p, S_XN, S_WS, WS_XN)
    p.e(f"s_lshl_b32 s40, s{S_U0}, 5")
    add64s(p, S_W1, S_W1, 40); add64s(p, S_W3, S_W3, 40)
    p.e(f"s_lshl_b32 s40, s{S_H}, 8")
    add64s(p, S_WQ, S_WQ, 40)
    p.e(f"s_lshl_b32 s40, s{S_U0}, 9\ns_add_u32 s40, s40, {WS_H}")
    add64s(p, S_HB, S_WS, 40)
    p.e(f"s_lshl_b32 s40, s{S_H}, 12\ns_add_u32 s40, s40, {WS_CTX}")
    add64s(p, S_CX, S_WS, 40)
    p.e(f"""
    s_lshl_b32 s40, s{S_H}, 20
    s_lshl_b32 s41, s{S_W}, 12
    s_add_u32 s40, s40, s41
    s_add_u32 s40, s40, {WS_KV}
    """)
    add64s(p, A.S_KVG, S_WS, 40)
    p.e(f"s_add_u32 s{A.S_KVM0}, s41, {A.KVBUF0}")

def xn_loads():
    out = []
    for s in range(16):
        L = []
        if s % 4 == 0:
            L += [f"s_add_u32 s{S_ST}, s{S_XN}, {s*1024}", f"s_addc_u32 s{S_ST+1}, s{S_XN+1}, 0"]
        for b in range(4):
            L.append(I(f"global_load_dwordx4 {ar(xfrag(s, b))}, v{V_XOFF+b}, {sr(S_ST)} offset:{(s%4)*1024}", tag=('XN', s)))
        out.append(L)
    return out

accF = lambda si, cb, b: 64 + ((cb * 2 + si) * 4 + b) * 4
accQ0 = lambda si, cb, b: 160 + (cb * 4 + b) * 4
accQ1 = lambda si, cb, b: (64 + (cb * 4 + b) * 4) if cb < 2 else (224 + ((cb - 2) * 4 + b) * 4)

def ffn_epilogue(ul, sc):
    L = []
    T = V_TMP4
    for b in range(4):
        G, U = accF(0, ul, b), accF(1, ul, b)
        stg = V_STG + ((ul * 4 + b) % 4) * 4
        L += [f"v_mul_f32 v{T+r}, {f32hex(-1.4426950408889634)}, v{G+r}" for r in range(4)]
        L += [f"v_exp_f32 v{T+r}, v{T+r}" for r in range(4)]
        L += [f"v_add_f32 v{T+r}, 1.0, v{T+r}" for r in range(4)]
        L += [f"v_rcp_f32 v{T+r}, v{T+r}" for r in range(4)]
        L += [f"v_mul_f32 v{G+r}, v{G+r}, v{U+r}" for r in range(4)]
        L += [f"v_mul_f32 v{G+r}, v{G+r}, v{T+r}" for r in range(4)]
        L += [f"v_cvt_pk_bf16_f32 v{stg}, v{G}, v{G+1}", f"v_cvt_pk_bf16_f32 v{stg+1}, v{G+2}, v{G+3}"]
        st = I(f"global_store_dwordx2 v{V_HOFF+b}, {vr(stg,2)}, {sr(S_HB)} offset:{ul*512} {sc}", tag='ST')
        L.append(st)
    return L

def q_epilogue(half, accf):
    L = []; k = 0
    for b in range(4):
        for tt in range(2):
            t = 2 * half + tt
            Aa, Bb = accf(0, 2*tt, b), accf(0, 2*tt+1, b)
            stg = V_STG + (k % 4) * 4; k += 1
            L += [f"v_cvt_pk_bf16_f32 v{stg}, v{Aa}, v{Aa+1}", f"v_cvt_pk_bf16_f32 v{stg+1}, v{Aa+2}, v{Aa+3}",
                  f"v_cvt_pk_bf16_f32 v{stg+2}, v{Bb}, v{Bb+1}", f"v_cvt_pk_bf16_f32 v{stg+3}, v{Bb+2}, v{Bb+3}"]
            L += [f"v_accvgpr_write_b32 a{A.QF(b, t)+r}, v{stg+r}" for r in range(4)]
    return L

def kv_stage_dma(p_or_list, stage_off, lds_off, tag):
    L = []
    for j in range(4):
        L += [f"s_add_u32 s{A.S_DT}, s{A.S_KVG}, {stage_off + j*16384}", f"s_addc_u32 s{A.S_DT+1}, s{A.S_KVG+1}, 0"]
        off = lds_off + j * 16384
        L += [f"s_add_u32 m0, s{A.S_KVM0}, {off}" if off >= 0 else f"s_sub_u32 m0, s{A.S_KVM0}, {-off}", "s_nop 0"]
        L += [I(f"global_load_lds_dwordx4 v{A.V_L16}, {sr(A.S_DT)} offset:{k*1024}", tag=tag) for k in range(4)]
    return L

def reduce_g(p, v, t, op):
    for sw in ("v_permlane16_swap_b32", "v_permlane32_swap_b32"):
        p.e(f"v_mov_b32 v{t}, v{v}\ns_nop 1\n{sw} v{v}, v{t}\ns_nop 1\n{op} v{v}, v{v}, v{t}")

def gen_att(name, sc="", stamp=False, abl=()):
    p = Prog(); sp = Stamps()
    p.e("s_cmp_ge_u32 s2, 256\ns_cbranch_scc1 L_att_end")
    if stamp: p.e(sp.instr())
    att_setup(p)
    chunks = [Chunk('F', [(S_W1, 0, proj.V_OFFF, 3, 2752), (S_W3, 0, proj.V_OFFF, 3, 2752)], 'T', accF),
              Chunk('Q0', [(S_WQ, 0, proj.V_OFFW, 4, 8192)], 'T', accQ0),
              Chunk('Q1', [(S_WQ, 128, proj.V_OFFW, 4, 8192)], 'T', accQ1)]
    ps = ProjStream(chunks, S_W, S_TMP)
    st = ps.build(S_M0W)
    def emit_dma(pre, d):
        p.ext(pre); p.e("s_nop 0"); p.ext([d])
    XL = xn_loads()
    for s in range(2): p.ext(XL[s])
    for k in range(8): emit_dma(*ps.dma_unit(k, S_M0W))
    for s in range(2, 6): p.ext(XL[s])
    for k in range(8): emit_dma(*ps.dma_unit(8 + k, S_M0W))
    for s in range(6, 10): p.ext(XL[s])
    p.ext([W(vm=[('W', 0)])])
    p.e("s_barrier")
    p.ext(ps.prologue_reads())
    p.ext([W(lg=[('F', 0)], vm=[('XN', 0)])])
    if stamp: p.e(sp.instr())
    for s in range(10, 16):
        st.floating('xn', ps.kstep_gap[(0, s - 9)], XL[s])
    for s in range(1, 16):
        st.at(ps.kstep_gap[(0, s)] - 1, W(vm=[('XN', s)]))
    q0s, q0e = ps.chunk_gap[1]; q1s, q1e = ps.chunk_gap[2]
    st.floating('ep', q0s + 8, ffn_epilogue(0, sc), latest=q0e)
    st.floating('ep', q0s + 8, ffn_epilogue(1, sc))
    e2 = ffn_epilogue(2, sc)
    e2b = []
    for x in e2:
        if isinstance(x, I) and x.kind == 'vstore':
            lab = f"L_h2skip{len(e2b)}"
            e2b.append((f"s_cmp_eq_u32 s{S_NU}, 5", f"s_cbranch_scc0 {lab}", x, f"{lab}:"))
        else: e2b.append(x)
    st.floating('ep', q0s + 8, e2b)
    st.floating('ep', ps.kstep_gap[(2, 4)] + 8, q_epilogue(0, accQ0))
    kv0 = kv_stage_dma(None, 0, 0, 'KV0')
    grp = []; cur = []; m0set = None
    for x in kv0:
        if isinstance(x, I):
            if not any('m0' in y for y in cur): cur = cur + [m0set]
            grp.append((cur, x)); cur = []
        elif x != "s_nop 0":
            cur.append(x)
            if 'm0' in x: m0set = x
    for k, (pre, d) in enumerate(grp):
        st.dma(ps.kstep_gap[(1, 2)] + 12 * k, pre, d)
    if stamp:
        for ci in range(3): st.at(ps.chunk_gap[ci][1] - 1, sp.instr())
    body = st.layout()
    p.ext(body)
    p.e("s_nop 7")
    p.ext(q_epilogue(1, accQ1))
    p.ext([W(vm=True, lg=True)])
    p.e("s_barrier")
    p.ext(kv_stage_dma(None, 65536, -KVBUF_DELTA, 'KV1'))
    p.e(f"""
    s_add_u32 s{A.S_KVG}, s{A.S_KVG}, {2*65536}
    s_addc_u32 s{A.S_KVG+1}, s{A.S_KVG+1}, 0
    v_add_u32 v{A.V_KVR}, {A.KVBUF0}, v{A.V_L16}
    s_sub_u32 s{A.S_CNT}, 14, s{S_P}
    """)
    K, V = A.kv_reads(0, 0)
    p.ext(K); p.ext(V)
    for r in range(128, 256): p.e(f"v_mov_b32 v{r}, 0")
    for b in range(4): p.e(f"v_mov_b32 v{A.V_L+b}, 0")
    p.e(f"""
    v_mov_b32 v{A.V_BIG}, {f32hex(-1e30)}
    v_and_b32 v{A.V_T}, 15, v{A.V_LANE}
    v_lshrrev_b32 v{A.V_T+1}, 4, v{A.V_LANE}
    v_lshlrev_b32 v{A.V_T+1}, 2, v{A.V_T+1}
    """)
    for r in range(4):
        p.e(f"v_add_u32 v{A.V_T+2}, {r}, v{A.V_T+1}\nv_cmp_le_u32 s[{A.S_MASK+2*r}:{A.S_MASK+2*r+1}], v{A.V_T+2}, v{A.V_T}")
    p.ext([W(lg=[('K', 0)])])
    for b in range(4):
        d = vr(A.V_S + 4*b)
        for t in range(4):
            p.e(f"{MF} {d}, {ar(A.KF(0,0,t))}, {ar(A.QF(b,t))}, {'0' if t == 0 else d}")
    p.e("s_nop 7")
    for b in range(4):
        s0 = A.V_S + 4*b
        p.e(f"v_max3_f32 v{A.V_NEGM+b}, v{s0}, v{s0+1}, v{s0+2}\nv_max_f32 v{A.V_NEGM+b}, v{A.V_NEGM+b}, v{s0+3}")
    for b in range(4):
        reduce_g(p, A.V_NEGM+b, A.V_T, "v_max_f32")
    for b in range(4):
        p.e(f"v_sub_f32 v{A.V_NEGM+b}, 0, v{A.V_NEGM+b}")
        for r in range(8): p.e(f"v_mov_b32 v{A.CI(b,0)+r}, v{A.V_NEGM+b}")
    def pipe_init(p):
        s1 = A.Sreg(1, 1)
        p.e(f"v_mov_b32 v{s1}, 0")
        for r in range(1, 4): p.e(f"v_mov_b32 v{s1+r}, v{A.V_BIG}")
        p.e(f"v_mov_b32 v{A.Preg(1)}, 0\nv_mov_b32 v{A.Preg(1)+1}, 0\ns_nop 1")
    pipe_init(p)
    if stamp: p.e(sp.instr())
    dpl = A.resolve_loop(A.stage_body(4, None, "Ldp"))
    ddg = A.resolve_loop(A.stage_body(4, (2, 3), "Ldd"))
    spl = A.resolve_loop(A.stage_body(2, None, "Lsp"))
    sdg = A.resolve_loop(A.stage_body(2, (0, 1), "Lsd", prefetch=False))
    for nm, b in (('dpl', dpl), ('ddg', ddg), ('spl', spl), ('sdg', sdg)):
        pr = check_hazards(dpl + b if b is ddg else (b + b), nm) + check_waits(b + b, nm)
        if pr: print("\n".join(pr[:10])); raise SystemExit("hazards in " + nm)
    frozen = lambda L: [I(i.text) if i.kind == 'wait' else i for i in L]
    main = Prog()
    main.e(f"s_mov_b32 s{S_LOOP}, s{S_P}\ns_cmp_eq_u32 s{S_LOOP}, 0\ns_cbranch_scc1 L_dual_diag\n.p2align 5\nL_dual_loop:")
    main.ext(frozen(dpl))
    main.e(f"s_sub_u32 s{S_LOOP}, s{S_LOOP}, 1\ns_cmp_lg_u32 s{S_LOOP}, 0\ns_cbranch_scc1 L_dual_loop\nL_dual_diag:")
    main.ext(frozen(ddg))
    main.ext(frozen(auto_waits(A.tail(4))))
    tmp = Prog(); pipe_init(tmp); main.ext(tmp.ins)
    if stamp: main.e(sp.instr())
    main.e(f"s_lshl_b32 s{S_LOOP}, s{S_P}, 1\ns_sub_u32 s{S_LOOP}, 14, s{S_LOOP}\ns_cmp_eq_u32 s{S_LOOP}, 0\ns_cbranch_scc1 L_single_diag\n.p2align 5\nL_single_loop:")
    main.ext(frozen(spl))
    main.e(f"s_sub_u32 s{S_LOOP}, s{S_LOOP}, 1\ns_cmp_lg_u32 s{S_LOOP}, 0\ns_cbranch_scc1 L_single_loop\nL_single_diag:")
    main.ext(A.mask_hook((0, 1), 0, "Lsd_m0"))
    main.ext(frozen(sdg))
    main.ext(frozen(auto_waits(A.tail(2))))
    if stamp: main.e(sp.instr())
    ep = Prog()
    ep.e("s_nop 7")
    for b in range(4): reduce_g(ep, A.V_L+b, A.V_T, "v_add_f32")
    for b in range(4): ep.e(f"v_rcp_f32 v{A.V_L+b}, v{A.V_L+b}")
    for b in range(4):
        ep.e(f"s_lshl_b32 s40, s{S_QB+b}, 17\nv_add_u32 v{V_HOFF+b}, s40, v{A.V_L16}")
    k = 0
    for b in range(4):
        for t in range(4):
            A0, B0 = A.O(2*t, b), A.O(2*t+1, b)
            for r in range(4):
                ep.e(f"v_mul_f32 v{A0+r}, v{A0+r}, v{A.V_L+b}\nv_mul_f32 v{B0+r}, v{B0+r}, v{A.V_L+b}")
            stg = V_STG + (k % 4) * 4; k += 1
            ep.e(f"v_cvt_pk_bf16_f32 v{stg}, v{A0}, v{A0+1}\nv_cvt_pk_bf16_f32 v{stg+1}, v{A0+2}, v{A0+3}")
            ep.e(f"v_cvt_pk_bf16_f32 v{stg+2}, v{B0}, v{B0+1}\nv_cvt_pk_bf16_f32 v{stg+3}, v{B0+2}, v{B0+3}")
            ep.e(f"global_store_dwordx4 v{V_HOFF+b}, {vr(stg)}, {sr(S_CX)} offset:{t*1024} {sc}")
    ep.e("s_waitcnt vmcnt(0)")
    if stamp:
        ep.e(sp.instr()); sp.dump(ep, None, 2)
    ep.e("L_att_end:\ns_endpgm")
    auto_waits(p.ins)
    if not stamp:
        pr0 = check_hazards(p.ins[-300:] + main.ins + ep.ins, 'junctions')
        if pr0: print("\n".join(pr0[:20])); raise SystemExit("junction hazards")
        pr = check_hazards(p.ins, name) + check_waits(p.ins, name) + check_scc(p.ins + main.ins + ep.ins, name) + check_m0(p.ins + main.ins, name) + check_hazards(ep.ins, 'ep') + check_hazards(A.tail(4), 'tail')
        if pr: print("\n".join(pr[:20])); raise SystemExit("hazards")
    return kernel_open(name) + p.text() + main.text() + ep.text(), kernel_desc(name, 512, 256)

KVBUF_DELTA = A.KVBUF0 - 32768

if __name__ == "__main__":
    a, b = gen_att("att_kernel")
    print(len(a.splitlines()), len(a))
```

```python
from common import *

def reduce64(p, v, t):
    for mod in ("quad_perm:[1,0,3,2]", "quad_perm:[2,3,0,1]", "row_half_mirror", "row_mirror"):
        p.e(f"s_nop 1\nv_add_f32_dpp v{v}, v{v}, v{v} {mod} row_mask:0xf bank_mask:0xf")
    for sw in ("v_permlane16_swap_b32", "v_permlane32_swap_b32"):
        p.e(f"v_mov_b32 v{t}, v{v}\ns_nop 1\n{sw} v{v}, v{t}\ns_nop 1\nv_add_f32 v{v}, v{v}, v{t}")

def ln_body(p, s_x, s_xn, s_w, v_lane, lds_base=0, sc=""):
    p.e(f"""
    s_lshl_b32 s40, s2, 3
    s_lshl_b32 s41, s{s_w}, 1
    s_add_u32 s40, s40, s41
    s_lshl_b32 s40, s40, 10
    v_lshlrev_b32 v8, 4, v{v_lane}
    v_add_u32 v8, s40, v8
    global_load_dwordx4 v[12:15], v8, {sr(s_x)}
    global_load_dwordx4 v[16:19], v8, {sr(s_x)} offset:1024
    s_waitcnt vmcnt(0)
    """)
    for row, (src, f) in enumerate(((12, 20), (16, 28))):
        for k in range(4):
            p.e(f"v_lshlrev_b32 v{f+2*k}, 16, v{src+k}")
            p.e(f"v_and_b32 v{f+2*k+1}, 0xffff0000, v{src+k}")
        s = 36 + row
        p.e(f"v_add_f32 v{s}, v{f}, v{f+1}")
        for k in range(2, 8): p.e(f"v_add_f32 v{s}, v{s}, v{f+k}")
        reduce64(p, s, 40)
        p.e(f"v_mul_f32 v{s}, {1.0/512!r}, v{s}") if False else p.e(f"v_mul_f32 v{s}, 0x3b000000, v{s}")
        for k in range(8): p.e(f"v_sub_f32 v{f+k}, v{f+k}, v{s}")
        q = 38 + row
        p.e(f"v_mul_f32 v{q}, v{f}, v{f}")
        for k in range(1, 8): p.e(f"v_fmac_f32 v{q}, v{f+k}, v{f+k}")
        reduce64(p, q, 40)
        p.e(f"v_mov_b32 v41, 0x3727c5ac")
        p.e(f"v_fmac_f32 v41, 0x3b000000, v{q}")
        p.e(f"v_rsq_f32 v41, v41\ns_nop 0")
        for k in range(8): p.e(f"v_mul_f32 v{f+k}, v{f+k}, v41")
        for k in range(4): p.e(f"v_cvt_pk_bf16_f32 v{src+k}, v{f+2*k}, v{f+2*k+1}")
    p.e(f"""
    s_lshl_b32 s41, s{s_w}, 5
    s_add_u32 s41, s41, {lds_base}
    v_lshlrev_b32 v8, 7, v{v_lane}
    v_add_u32 v8, s41, v8
    ds_write_b128 v8, v[12:15]
    ds_write_b128 v8, v[16:19] offset:16
    s_waitcnt lgkmcnt(0)
    s_barrier
    v_lshlrev_b32 v8, 4, v0
    v_add_u32 v8, {lds_base}, v8
    ds_read_b128 v[12:15], v8
    ds_read_b128 v[16:19], v8 offset:4096
    v_lshrrev_b32 v9, 3, v0
    v_lshlrev_b32 v9, 8, v9
    v_and_b32 v10, 7, v0
    v_lshlrev_b32 v10, 4, v10
    v_add_u32 v9, v9, v10
    s_lshr_b32 s40, s2, 1
    s_lshl_b32 s40, s40, 14
    s_and_b32 s41, s2, 1
    s_lshl_b32 s41, s41, 7
    s_add_u32 s40, s40, s41
    v_add_u32 v9, s40, v9
    v_add_u32 v10, 0x2000, v9
    s_waitcnt lgkmcnt(0)
    global_store_dwordx4 v9, v[12:15], {sr(s_xn)} {sc}
    global_store_dwordx4 v10, v[16:19], {sr(s_xn)} {sc}
    """)

def gen_ln(name):
    p = Prog()
    p.e(f"""
    s_cmp_ge_u32 s2, 256
    s_cbranch_scc1 L_ln_end
    s_load_dwordx2 s[4:5], s[0:1], {KA['x']}
    s_load_dwordx2 s[6:7], s[0:1], {KA['ws']}
    """)
    wg_decode(p, 20, 21, 22, 1)
    p.e("s_waitcnt lgkmcnt(0)")
    ln_body(p, 4, 6, 22, 1)
    p.e("s_waitcnt vmcnt(0)\nL_ln_end:\ns_endpgm")
    check(p, name)
    return kernel_open(name) + p.text(), kernel_desc(name, 48, 48)
```

```python
from proj import *

import struct
QSCALE_HEX = hex(struct.unpack('<I', struct.pack('<f', 1.4426950408889634 / (128 ** 0.5)))[0])
S_H, S_J, S_W = 20, 21, 22
S_CKV, S_WUK, S_WUV, S_KV = 4, 6, 8, 10
S_M0W = 23
S_TMP = 24
S_ST  = 28
S_XB  = 32

def t1_setup(p):
    p.e(f"""
    s_load_dwordx2 {sr(S_CKV)}, s[0:1], {KA['ckv']}
    s_load_dwordx2 {sr(S_WUK)}, s[0:1], {KA['wuk']}
    s_load_dwordx2 {sr(S_WUV)}, s[0:1], {KA['wuv']}
    s_load_dwordx2 {sr(S_KV)}, s[0:1], {KA['ws']}
    """)
    wg_decode(p, S_H, S_J, S_W, V_LANE)
    vl = V_LANE
    p.e(f"v_lshlrev_b32 v{V_ST}, 4, v{vl}")
    setup_tr_addr(p, vl, V_TR, 60, 61, 62, 'nat')
    setup_w_voff(p, V_OFFW, vl, S_W, 8192, 60, 61, 40)
    p.e(f"""
    v_lshrrev_b32 v60, 3, v{vl}
    v_lshrrev_b32 v61, 1, v60
    v_and_b32 v62, 7, v{vl}
    v_xor_b32 v63, v62, v61
    v_lshlrev_b32 v63, 4, v63
    v_lshlrev_b32 v60, 10, v60
    v_add_u32 v{V_OFFX}, v63, v60
    v_or_b32 v61, 4, v61
    v_xor_b32 v63, v62, v61
    v_lshlrev_b32 v63, 4, v63
    v_add_u32 v{V_OFFX+1}, v63, v60
    v_add_u32 v{V_OFFX+1}, 0x2000, v{V_OFFX+1}
    """)
    for i in range(2, 8):
        p.e(f"v_add_u32 v{V_OFFX+i}, {0x4000*(i//2)}, v{V_OFFX+(i&1)}")
    p.e(f"""
    s_lshl_b32 s{S_XB}, s{S_W}, 14
    s_add_u32 s{S_XB}, s{S_XB}, {XST}
    v_and_b32 v60, 15, v{vl}
    v_lshrrev_b32 v61, 4, v{vl}
    v_lshrrev_b32 v62, 1, v60
    v_xor_b32 v61, v61, v62
    v_lshlrev_b32 v61, 4, v61
    v_lshlrev_b32 v60, 7, v60
    v_add_u32 v60, v60, v61
    v_add_u32 v{V_XR0}, s{S_XB}, v60
    v_xor_b32 v{V_XR1}, 64, v{V_XR0}
    s_lshl_b32 s{S_M0W}, s{S_W}, 10
    s_waitcnt lgkmcnt(0)
    """)
    p.e(f"""
    s_lshl_b32 s40, s{S_J}, 8
    s_lshl_b32 s41, s{S_W}, 6
    s_add_u32 s40, s40, s41
    s_lshl_b32 s40, s40, 10
    """)
    add64s(p, S_CKV, S_CKV, 40)
    p.e(f"s_lshl_b32 s40, s{S_H}, 8")
    add64s(p, S_WUK, S_WUK, 40)
    add64s(p, S_WUV, S_WUV, 40)
    p.e(f"""
    s_lshl_b32 s40, s{S_H}, 6
    s_lshl_b32 s41, s{S_J}, 3
    s_add_u32 s40, s40, s41
    s_lshl_b32 s41, s{S_W}, 1
    s_add_u32 s40, s40, s41
    s_lshl_b32 s40, s40, 14
    s_add_u32 s40, s40, {WS_KV}
    """)
    add64s(p, S_KV, S_KV, 40)

def x_dma(kp, i):
    lds_off = (kp & 1) * 8192 + i * 1024 - kp * 128
    return ([f"s_add_u32 m0, s{S_XB}, {lds_off}" if lds_off >= 0 else f"s_sub_u32 m0, s{S_XB}, {-lds_off}"],
            I(f"global_load_lds_dwordx4 v{V_OFFX+i}, {sr(S_CKV)} offset:{kp*128}", tag=('X', kp)))

def x_reads(kp):
    out = []
    for e in range(2):
        for b in range(4):
            out.append(I(f"ds_read_b128 {ar(xfrag(2*kp+e, b))}, v{V_XR0 if e == 0 else V_XR1} offset:{(kp&1)*8192 + b*2048}", tag=('XR', kp)))
    return out

def store_group(data_regs_list, win_off, k, sc):
    stg = V_STG + (k % 4) * 4
    (A, B), imm = data_regs_list
    L = [f"v_cvt_pk_bf16_f32 v{stg}, v{A}, v{A+1}", f"v_cvt_pk_bf16_f32 v{stg+1}, v{A+2}, v{A+3}",
         f"v_cvt_pk_bf16_f32 v{stg+2}, v{B}, v{B+1}", f"v_cvt_pk_bf16_f32 v{stg+3}, v{B+2}, v{B+3}"]
    return L, stg, imm

def epilogue_list(kind, accf, sc):
    L = []; k = 0
    groups = []
    if kind == 'K':
        for b in range(4):
            win = (b >> 1) * 16384 + (b & 1) * 4096
            groups.append((win, [(accf(2*t // 4, (2*t) % 4, b), accf((2*t+1) // 4, (2*t+1) % 4, b), t * 1024) for t in range(4)]))
    else:
        vh = int(kind[1])
        for e in range(2):
            win = e * 16384 + 8192 + vh * 4096
            groups.append((win, [(accf(0, cb, 2*e), accf(0, cb, 2*e+1), cb * 1024) for cb in range(4)]))
    for gi, (win, items) in enumerate(groups):
        t = S_ST + 2 * (gi % 2)
        L += [f"s_add_u32 s{t}, s{S_KV}, {win}", f"s_addc_u32 s{t+1}, s{S_KV+1}, 0"]
        for (A, B, imm) in items:
            stg = V_STG + (k % 4) * 4; k += 1
            if kind == 'K':
                L += [f"v_mul_f32 v{R+r}, {QSCALE_HEX}, v{R+r}" for R in (A, B) for r in range(4)]
            L += [f"v_cvt_pk_bf16_f32 v{stg}, v{A}, v{A+1}", f"v_cvt_pk_bf16_f32 v{stg+1}, v{A+2}, v{A+3}",
                  f"v_cvt_pk_bf16_f32 v{stg+2}, v{B}, v{B+1}", f"v_cvt_pk_bf16_f32 v{stg+3}, v{B+2}, v{B+3}",
                  I(f"global_store_dwordx4 v{V_ST}, {vr(stg)}, {sr(t)} offset:{imm} {sc}", tag='ST')]
    return L

def gen_t1(name, sc="", stamp=False, abl=()):
    p = Prog()
    sp = Stamps()
    p.e("s_cmp_ge_u32 s2, 256\ns_cbranch_scc1 L_t1_end")
    if stamp: p.e(sp.instr())
    t1_setup(p)
    accK = lambda si, cb, b: 128 + ((si * 4 + cb) * 4 + b) * 4
    accV0 = lambda si, cb, b: 64 + (cb * 4 + b) * 4
    accV1 = lambda si, cb, b: 128 + (cb * 4 + b) * 4
    chunks = [Chunk('K', [(S_WUK, 0, V_OFFW, 4, 8192), (S_WUK, 128, V_OFFW, 4, 8192)], 'T', accK),
              Chunk('V0', [(S_WUV, 0, V_OFFW, 4, 8192)], 'N', accV0),
              Chunk('V1', [(S_WUV, 128, V_OFFW, 4, 8192)], 'N', accV1)]
    ps = ProjStream(chunks, S_W, S_TMP)
    st = ps.build(S_M0W)
    def emit_dma(pre, d):
        p.ext(pre); p.e("s_nop 0"); p.ext([d])
    for i in range(8): emit_dma(*x_dma(0, i))
    for k in range(8): emit_dma(*ps.dma_unit(k, S_M0W))
    for i in range(8): emit_dma(*x_dma(1, i))
    for k in range(8): emit_dma(*ps.dma_unit(8 + k, S_M0W))
    p.ext([W(vm=[('X', 0)])])
    p.ext(x_reads(0))
    p.ext([W(vm=[('W', 0)])])
    p.e("s_barrier")
    p.ext(ps.prologue_reads())
    if stamp: p.e(sp.instr() + "\ns_waitcnt lgkmcnt(0)")
    p.ext([W(lg=[('F', 0), ('XR', 0)])])
    if stamp:
        for ci in range(3): st.at(ps.chunk_gap[ci][1] - 1, sp.instr())
        for kp in (1, 2, 4): st.at(ps.kstep_gap[(0, 2*kp)] + 2, sp.instr())
    for kp in range(8):
        G = ps.kstep_gap[(0, 2*kp)]; G2 = ps.kstep_gap[(0, 2*kp+1)]
        if kp + 2 < 8:
            for i in range(8):
                pre, d = x_dma(kp + 2, i)
                st.dma(G + 1 + 3 * i, pre, d)
        if kp + 1 < 8:
            st.at(G2, W(vm=[('X', kp + 1)]))
            st.floating('xr', G2 + 1, x_reads(kp + 1))
            Gn = ps.kstep_gap[(0, 2*kp+2)]
            st.at(Gn - 1, W(lg=[('XR', kp + 1)]))
    st.floating('ep', ps.chunk_gap[1][0] + 8, epilogue_list('K', accK, sc), latest=ps.chunk_gap[1][1])
    st.floating('ep2', ps.chunk_gap[2][0] + 8, epilogue_list('V0', accV0, sc))
    body = st.layout()
    if 'nostore' in abl: body = [i for i in body if i.kind != 'vstore']
    if 'noW' in abl: body = [i for i in body if not (i.kind == 'dma' and i.tag[0] == 'W')]
    if 'noX' in abl: body = [i for i in body if not (i.kind == 'dma' and i.tag[0] == 'X')]
    if 'nobar' in abl: body = [i for i in body if i.kind != 'barrier']
    if 'notr' in abl: body = [i for i in body if not (i.kind == 'ds_read' and i.tag[0] == 'F')]
    if 'pure' in abl: body = [i for i in body if i.kind in ('mfma', 'smem')]
    if 'noscalar' in abl: body = [i for i in body if i.kind not in ('salu', 'nop', 'wait')]
    if 'nocvt' in abl: body = [i for i in body if i.kind not in ('valu',)]
    if 'noxr' in abl: body = [i for i in body if i.kind not in ('ds_read',)]
    p.ext(body)
    p.e("s_nop 7\ns_nop 3")
    p.ext(epilogue_list('V1', accV1, sc))
    p.e("s_waitcnt vmcnt(0)")
    if stamp:
        p.e(sp.instr()); sp.dump(p, None, 1)
    p.e("L_t1_end:\ns_endpgm")
    if not stamp: check(p, name)
    else: auto_waits(p.ins)
    return kernel_open(name) + p.text(), kernel_desc(name, 512, 256)

if __name__ == "__main__":
    a, b = gen_t1("t1_kernel")
    print(len(a.splitlines()))
    print(a[3000:9000])
```

```python
from common import *
from proj import setup_tr_addr
from sched import Stream

S_X, S_WO, S_W2, S_OUT, S_WS = 4, 6, 8, 10, 12
S_HB, S_CB = 14, 16
S_RT, S_CT, S_W = 20, 21, 22
S_T = 24
V_LANE, V_L16, V_L8 = 1, 2, 3
V_OFFW = 4
V_TR = 8
V_WF = 16
V_AOFF = 32
V_RES = 40
V_OOFF = 48
V_AF = 64
ACC = 128
D = 4

def gen_t4(name, stamp=False):
    p = Prog(); sp = Stamps()
    p.e("s_cmp_ge_u32 s2, 256\ns_cbranch_scc1 L_t4_end")
    if stamp: p.e(sp.instr())
    p.e(f"""
    s_load_dwordx2 {sr(S_X)}, s[0:1], {KA['x']}
    s_load_dwordx2 {sr(S_WO)}, s[0:1], {KA['wo']}
    s_load_dwordx2 {sr(S_W2)}, s[0:1], {KA['w2']}
    s_load_dwordx2 {sr(S_OUT)}, s[0:1], {KA['out']}
    s_load_dwordx2 {sr(S_WS)}, s[0:1], {KA['ws']}
    """)
    wg_decode(p, S_RT, S_CT, S_W, V_LANE)
    vl = V_LANE
    p.e(f"v_lshlrev_b32 v{V_L16}, 4, v{vl}\nv_lshlrev_b32 v{V_L8}, 3, v{vl}")
    setup_tr_addr(p, vl, V_TR, 60, 61, 62, 'perm')
    p.e(f"s_lshl_b32 s40, s{S_W}, 14")
    for cb in range(4): p.e(f"v_add_u32 v{V_TR+cb}, s40, v{V_TR+cb}")
    p.e(f"""
    v_lshrrev_b32 v60, 3, v{vl}
    v_bfe_u32 v61, v60, 1, 2
    v_lshlrev_b32 v61, 1, v61
    v_and_b32 v62, 7, v{vl}
    v_xor_b32 v62, v62, v61
    v_lshlrev_b32 v62, 4, v62
    v_lshlrev_b32 v60, 10, v60
    v_add_u32 v{V_OFFW}, v60, v62
    """)
    for i in range(1, 4): p.e(f"v_add_u32 v{V_OFFW+i}, {i*8192}, v{V_OFFW}")
    for b in range(4):
        p.e(f"""
        s_lshl_b32 s41, s{S_RT}, 2
        s_add_u32 s41, s41, {b}
        s_lshl_b32 s42, s41, 17
        v_add_u32 v{V_AOFF+b}, s42, v{V_L16}
        s_mul_i32 s42, s41, {86*512}
        v_add_u32 v{V_AOFF+4+b}, s42, v{V_L8}
        """)
    p.e(f"""
    s_lshl_b32 s41, s{S_RT}, 6
    s_lshl_b32 s42, s{S_W}, 4
    s_add_u32 s41, s41, s42
    v_and_b32 v60, 15, v{vl}
    v_add_u32 v60, s41, v60
    v_lshlrev_b32 v60, 10, v60
    v_lshrrev_b32 v61, 4, v{vl}
    v_lshlrev_b32 v61, 3, v61
    s_lshl_b32 s42, s{S_CT}, 7
    v_add_u32 v61, s42, v61
    v_add_u32 v{V_OOFF}, v60, v61
    s_waitcnt lgkmcnt(0)
    """)
    p.e(f"s_lshl_b32 s40, s{S_CT}, 7")
    add64s(p, S_WO, S_WO, 40); add64s(p, S_W2, S_W2, 40)
    p.e(f"s_lshl_b32 s40, s{S_W}, 15")
    add64s(p, S_WO, S_WO, 40); add64s(p, S_W2, S_W2, 40)
    p.e(f"s_lshl_b32 s40, s{S_W}, 10\ns_add_u32 s40, s40, {WS_H}")
    add64s(p, S_HB, S_WS, 40)
    p.e(f"s_lshl_b32 s40, s{S_W}, 10\ns_add_u32 s40, s40, {WS_CTX}")
    add64s(p, S_CB, S_WS, 40)
    p.e(f"s_lshl_b32 s43, s{S_W}, 14")
    for nb in range(4):
        p.e(f"global_load_dwordx2 {vr(V_RES+2*nb,2)}, v{V_OOFF}, {sr(S_X)} offset:{nb*32}")
    steps = [('h', i) for i in range(11)] + [('c', i) for i in range(32)]
    def issue(n):
        kind, i = steps[n]
        L = []
        slot = n % D
        t = S_T + 2 * (n % 2); t2 = S_T + 4 + 2 * (n % 2)
        if kind == 'h':
            woff = i * 4 * 32 * 1024; aoff = i * 4 * 1024
            if i == 10:
                L += [f"s_cmp_eq_u32 s{S_W}, 3", f"s_cselect_b32 s46, 1, 0", f"s_lshl_b32 s44, s46, 15", f"s_sub_u32 s44, {woff}, s44", f"s_lshl_b32 s45, s46, 10", f"s_sub_u32 s45, {aoff}, s45",
                      f"s_add_u32 s{t}, s{S_W2}, s44", f"s_addc_u32 s{t+1}, s{S_W2+1}, 0",
                      f"s_add_u32 s{t2}, s{S_HB}, s45", f"s_addc_u32 s{t2+1}, s{S_HB+1}, 0"]
            else:
                L += [f"s_add_u32 s{t}, s{S_W2}, {woff}", f"s_addc_u32 s{t+1}, s{S_W2+1}, 0",
                      f"s_add_u32 s{t2}, s{S_HB}, {aoff}", f"s_addc_u32 s{t2+1}, s{S_HB+1}, 0"]
        else:
            L += [f"s_add_u32 s{t}, s{S_WO}, {i*4*32*1024}", f"s_addc_u32 s{t+1}, s{S_WO+1}, 0",
                  f"s_add_u32 s{t2}, s{S_CB}, {i*4*1024}", f"s_addc_u32 s{t2+1}, s{S_CB+1}, 0"]
        for r in range(4):
            L += [f"s_add_u32 m0, s43, {slot*4096 + r*1024}", "s_nop 0", I(f"global_load_lds_dwordx4 v{V_OFFW+r}, {sr(t)}", tag=('S', n))]
        for b in range(4):
            af = V_AF + (slot * 4 + b) * 4
            if kind == 'h':
                L += [I(f"global_load_dwordx2 {vr(af,2)}, v{V_AOFF+4+b}, {sr(t2)}", tag=('S', n)),
                      I(f"global_load_dwordx2 {vr(af+2,2)}, v{V_AOFF+4+b}, {sr(t2)} offset:512", tag=('S', n))]
            else:
                L.append(I(f"global_load_dwordx4 {vr(af)}, v{V_AOFF+b}, {sr(t2)}", tag=('S', n)))
        return L
    for n in range(D - 1): p.ext(issue(n))
    for n in range(len(steps)):
        slot = n % D
        p.ext([W(vm=[('S', n)])])
        for cb in range(4):
            p.ext([I(f"ds_read_b64_tr_b16 {vr(V_WF+4*cb,2)}, v{V_TR+cb} offset:{slot*4096}", tag=('F', n, cb)),
                   I(f"ds_read_b64_tr_b16 {vr(V_WF+4*cb+2,2)}, v{V_TR+cb} offset:{slot*4096+2048}", tag=('F', n, cb))])
        if steps[n] == ('h', 10):
            p.e(f"s_cmp_eq_u32 s{S_W}, 3\ns_cbranch_scc0 L_t4_nz")
            for r in range(16): p.e(f"v_mov_b32 v{V_AF + slot*16 + r}, 0")
            p.e("L_t4_nz:\ns_nop 1")
        if n + D - 1 < len(steps): p.ext(issue(n + D - 1))
        for cb in range(4):
            p.ext([W(lg=[('F', n, cb)])])
            for b in range(4):
                acc = vr(ACC + (cb * 4 + b) * 4)
                p.e(f"{MF} {acc}, {vr(V_WF+4*cb)}, {vr(V_AF + (slot*4+b)*4)}, {'0' if n == 0 else acc}")
    if stamp: p.e(sp.instr())
    p.e("s_nop 7\ns_barrier")
    p.e(f"s_lshl_b32 s40, s{S_W}, 14\nv_add_u32 v60, s40, v{V_L16}")
    for k in range(16): p.e(f"ds_write_b128 v60, {vr(ACC+4*k)} offset:{k*1024}")
    p.e("s_waitcnt lgkmcnt(0)\ns_barrier")
    p.e(f"s_lshl_b32 s40, s{S_W}, 10\nv_add_u32 v60, s40, v{V_L16}")
    for ww in range(4):
        for nb in range(4):
            p.e(f"ds_read_b128 {vr(64 + (ww*4+nb)*4)}, v60 offset:{ww*16384 + nb*4096}")
    p.e("s_waitcnt lgkmcnt(0) vmcnt(0)")
    for nb in range(4):
        for r in range(4):
            a = 64 + nb*4 + r
            for ww in range(1, 4): p.e(f"v_add_f32 v{a}, v{a}, v{64 + (ww*4+nb)*4 + r}")
        x0, x1 = V_RES + 2*nb, V_RES + 2*nb + 1
        a = 64 + nb*4
        p.e(f"""
        v_lshlrev_b32 v56, 16, v{x0}
        v_and_b32 v57, 0xffff0000, v{x0}
        v_lshlrev_b32 v58, 16, v{x1}
        v_and_b32 v59, 0xffff0000, v{x1}
        v_add_f32 v{a}, v{a}, v56
        v_add_f32 v{a+1}, v{a+1}, v57
        v_add_f32 v{a+2}, v{a+2}, v58
        v_add_f32 v{a+3}, v{a+3}, v59
        v_cvt_pk_bf16_f32 v{x0}, v{a}, v{a+1}
        v_cvt_pk_bf16_f32 v{x1}, v{a+2}, v{a+3}
        global_store_dwordx2 v{V_OOFF}, {vr(x0,2)}, {sr(S_OUT)} offset:{nb*32}
        """)
    p.e("s_waitcnt vmcnt(0)")
    if stamp:
        p.e(sp.instr()); sp.dump(p, None, 3)
    p.e("L_t4_end:\ns_endpgm")
    if not stamp: check(p, name)
    else: auto_waits(p.ins)
    return kernel_open(name) + p.text(), kernel_desc(name, 256, 256)

if __name__ == "__main__":
    a, b = gen_t4("t4_kernel"); print(len(a.splitlines()), len(a))
```

```python
from common import *

RING = 0
XST  = 98304
V_LANE = 1
V_OFFW = 2
V_OFFF = 3
V_ST   = 4
V_XR0, V_XR1 = 5, 6
V_TR   = 8
V_WF   = 16
V_STG  = 32
V_OFFX = 48
ACC_HI = 128
ACC_MID = 64

def setup_tr_addr(p, vl, base, t0, t1, t2, rowmode):
    p.e(f"""
    v_lshrrev_b32 v{t0}, 4, v{vl}
    v_bfe_u32 v{t1}, v{vl}, 2, 2
    """)
    if rowmode == 'nat':
        p.e(f"""
        v_lshlrev_b32 v{t2}, 3, v{t0}
        v_add_u32 v{t2}, v{t2}, v{t1}
        v_and_b32 v{t0}, 1, v{t0}
        v_lshlrev_b32 v{t0}, 1, v{t0}
        v_lshrrev_b32 v{t1}, 1, v{t1}
        v_or_b32 v{t0}, v{t0}, v{t1}
        """)
    else:
        p.e(f"""
        v_lshlrev_b32 v{t2}, 2, v{t0}
        v_add_u32 v{t2}, v{t2}, v{t1}
        v_bfe_u32 v{t0}, v{t2}, 1, 2
        """)
    p.e(f"""
    v_lshlrev_b32 v{t2}, 7, v{t2}
    v_lshlrev_b32 v{t0}, 5, v{t0}
    v_add_u32 v{t2}, v{t2}, v{t0}
    v_and_b32 v{t1}, 3, v{vl}
    v_lshlrev_b32 v{t1}, 3, v{t1}
    v_add_u32 v{base}, v{t2}, v{t1}
    """)
    for cb in range(1, 4):
        p.e(f"v_xor_b32 v{base+cb}, {cb << 5}, v{base}")
    for cb in range(4):
        p.e(f"v_add_u32 v{base+4+cb}, 0x10000, v{base+cb}")

def setup_w_voff(p, dst, vl, s_w, stride, t0, t1, s_t, rowmode='nat', clamp_pieces=None):
    p.e(f"""
    v_lshrrev_b32 v{t0}, 3, v{vl}
    """)
    if rowmode == 'nat':
        p.e(f"""
        v_bfe_u32 v{t1}, v{t0}, 1, 1
        s_and_b32 s{s_t}, s{s_w}, 1
        s_lshl_b32 s{s_t}, s{s_t}, 1
        v_or_b32 v{t1}, s{s_t}, v{t1}
        """)
    else:
        p.e(f"v_bfe_u32 v{t1}, v{t0}, 1, 2")
    p.e(f"""
    v_lshlrev_b32 v{t1}, 1, v{t1}
    v_and_b32 v{dst}, 7, v{vl}
    v_xor_b32 v{dst}, v{dst}, v{t1}
    """)
    if clamp_pieces is not None:
        p.e(f"v_min_u32 v{dst}, s{clamp_pieces}, v{dst}")
    p.e(f"""
    v_lshlrev_b32 v{dst}, 4, v{dst}
    s_lshl_b32 s{s_t}, s{s_w}, 3
    v_add_u32 v{t0}, s{s_t}, v{t0}
    s_mov_b32 s{s_t}, {stride}
    v_mul_lo_u32 v{t0}, v{t0}, s{s_t}
    v_add_u32 v{dst}, v{dst}, v{t0}
    """)

class Chunk:
    def __init__(self, name, srcs, mode, acc, nblk=4):
        self.name, self.srcs, self.mode, self.acc, self.nblk = name, srcs, mode, acc, nblk

def xfrag(s, b): return (s * 4 + b) * 4

class ProjStream:
    def __init__(self, chunks, s_w, s_tmp, first_stage_preissued=True):
        self.chunks = chunks; self.s_w = s_w; self.s_tmp = s_tmp
        self.units = []
        for ci, c in enumerate(chunks):
            for s in range(16):
                for si in range(len(c.srcs)):
                    self.units.append((ci, s, si))
        assert len(self.units) % 8 == 0
        self.nstage = len(self.units) // 8
        self.st = Stream()
        self.frags = []
        self.chunk_gap = {}
        self.kstep_gap = {}
    def unit_lds(self, u):
        return RING + ((u // 8) % 3) * 32768 + (u % 8) * 4096
    def dma_unit(self, u, s_m0base):
        ci, s, si = self.units[u]
        base, coff, voff, ncb, kstride = self.chunks[ci].srcs[si]
        t = self.s_tmp + 2 * (u % 2)
        pre = [f"s_add_u32 s{t}, s{base}, {s * 32 * kstride + coff}",
               f"s_addc_u32 s{t+1}, s{base+1}, 0",
               f"s_add_u32 m0, s{s_m0base}, {self.unit_lds(u)}"]
        return pre, I(f"global_load_lds_dwordx4 v{voff}, {sr(t)}", tag=('W', u // 8))
    def tr_reads(self, fi):
        u, cb = self.frags[fi][0], self.frags[fi][1]
        off = self.unit_lds(u)
        a = V_TR + cb
        if off >= 65536 - 512: a += 4; off -= 65536
        assert off >= 0
        d = V_WF + (fi % 4) * 4
        return [I(f"ds_read_b64_tr_b16 {vr(d,2)}, v{a} offset:{off}", tag=('F', fi)),
                I(f"ds_read_b64_tr_b16 {vr(d+2,2)}, v{a} offset:{off+512}", tag=('F', fi))]
    def build(self, s_m0base):
        st = self.st
        for u, (ci, s, si) in enumerate(self.units):
            c = self.chunks[ci]
            ncb = c.srcs[si][3]
            for cb in range(ncb):
                fi = len(self.frags)
                wf = vr(V_WF + (fi % 4) * 4)
                g0 = None
                for b in range(c.nblk):
                    acc = vr(c.acc(si, cb, b))
                    cin = acc if s > 0 else "0"
                    xf = ar(xfrag(s, b))
                    if c.mode == 'T': g = st.mfma(f"{MF} {acc}, {wf}, {xf}, {cin}")
                    else: g = st.mfma(f"{MF} {acc}, {xf}, {wf}, {cin}")
                    if g0 is None: g0 = g
                self.frags.append((u, cb, g0))
                self.kstep_gap.setdefault((ci, s), g0)
                lo, hi = self.chunk_gap.get(ci, (g0, g0))
                self.chunk_gap[ci] = (lo, g0 + c.nblk - 1)
        nf = len(self.frags)
        first_frag_of_stage = {}
        for fi, (u, cb, g0) in enumerate(self.frags):
            first_frag_of_stage.setdefault(u // 8, fi)
        self.first_frag_of_stage = first_frag_of_stage
        for fi in range(1, nf):
            g = self.frags[fi][2] - 1
            st.at(g, W(lg=[('F', fi)]))
        for fi in range(nf):
            tgt = fi + 3
            if tgt >= nf: continue
            g0 = self.frags[fi][2]
            stg = self.frags[tgt][0] // 8
            if first_frag_of_stage[stg] == tgt:
                st.at(g0, W(vm=[('W', stg)]))
                st.at(g0, "s_barrier")
                r = self.tr_reads(tgt)
                st.at(g0 + 1, r[0]); st.at(g0 + 2, r[1])
                if stg + 1 < self.nstage:
                    for k in range(8):
                        pre, d = self.dma_unit((stg + 1) * 8 + k, s_m0base)
                        st.dma(g0 + 3 + 4 * k, pre, d)
            else:
                r = self.tr_reads(tgt)
                st.at(g0, r[0]); st.at(g0 + 1, r[1])
        return st
    def prologue_reads(self):
        out = []
        for fi in range(3): out += self.tr_reads(fi)
        return out
```

```python
from asmlib import I, W

SCALARISH = ('salu', 'wait', 'nop', 'barrier', 'branch', 'misc')
def cost(i):
    return 2 if i.kind == 'trans' else 1

def mk(x): return x if isinstance(x, I) else I(x)

class Stream:
    def __init__(self, cap=2):
        self.spine = []; self.gaps = []; self.cap = cap
        self.queues = {}
        self.dmas = []
    def mfma(self, text):
        self.spine.append(I(text)); self.gaps.append([]); return len(self.spine) - 1
    def at(self, gap, ins):
        if not isinstance(ins, (list, tuple)): ins = [ins]
        for x in ins: self.gaps[gap].append(mk(x))
    def floating(self, q, earliest, ins, latest=None):
        if not isinstance(ins, list): ins = [ins]
        k = 0
        while k < len(ins):
            x = ins[k]
            if isinstance(x, tuple): grp = [mk(y) for y in x]
            else:
                grp = [mk(x)]
                if grp[0].op == 's_add_u32' and k + 1 < len(ins) and not isinstance(ins[k+1], tuple) and mk(ins[k+1]).op == 's_addc_u32':
                    grp.append(mk(ins[k+1])); k += 1
            self.queues.setdefault(q, []).append((earliest, latest, grp))
            k += 1
    def dma(self, earliest, scalars, ins):
        self.dmas.append((earliest, [mk(x) for x in scalars], mk(ins)))
    def used(self, lst):
        u = 0
        for k, x in enumerate(lst):
            if k == 0 and x.kind in SCALARISH: continue
            if x.kind == 'label': continue
            u += cost(x)
        return u
    def layout(self, dma_spacing=1):
        n = len(self.spine); gaps = self.gaps
        last = -1
        for (e, sc, d) in sorted(self.dmas, key=lambda t: t[0]):
            g = max(e, last)
            k = 0
            while k < len(sc):
                grp = [sc[k]]
                if sc[k].op == 's_add_u32' and k + 1 < len(sc) and sc[k+1].op == 's_addc_u32':
                    grp.append(sc[k+1]); k += 1
                k += 1
                while g < n - 1 and self.used(gaps[g] + grp) > self.cap: g += 1
                gaps[g] += grp
            g += 1
            while g < n - 1 and (self.used(gaps[g] + [d]) > self.cap or any(y.kind == 'barrier' for y in gaps[g])): g += 1
            assert g < n, "dma ran off the stream"
            k = 0
            while k < len(gaps[g]) and gaps[g][k].kind in ('wait',): k += 1
            gaps[g].insert(k, d)
            last = g + dma_spacing - 1
        for q, L in self.queues.items():
            g = 0
            for (e, l, grp) in L:
                g = max(g, e)
                cap = self.cap if len(grp) == 1 else max(self.cap, sum(cost(y) for y in grp if y.kind != 'label'))
                while g < n and self.used(gaps[g] + grp) > cap: g += 1
                if g >= n: g = n - 1
                if l is not None and g > l:
                    raise RuntimeError(f"queue {q}: missed deadline {grp[0].text}: {g} > {l}")
                gaps[g] += grp
        out = []
        for m, L in zip(self.spine, gaps):
            out.append(m); out += L
        return out
```

```python
import sys
from build import *
from k_ln import gen_ln
from k_t1 import gen_t1
from k_att import gen_att
from k_t4 import gen_t4
stamp = 'stamp' in sys.argv
if 'cyc' in sys.argv: Stamps.cyc = True
out = sys.argv[1]
a,b = gen_ln('ln_kernel'); c,d = gen_t1('t1_kernel', stamp=stamp); e,f = gen_att('att_kernel', stamp=stamp); g,h = gen_t4('t4_kernel', stamp=stamp)
txt = assemble_file([('ln_kernel',a,b,256,256,8192),('t1_kernel',c,d,256,256,163840),('att_kernel',e,f,256,256,163840),('t4_kernel',g,h,256,256,65536)])
open(out,'w').write(txt)
print(len(txt))
```

```python
import re

def regs_of(tok):
    tok = tok.strip()
    neg = tok.startswith('-')
    if neg: tok = tok[1:]
    m = re.fullmatch(r'abs\((.*)\)', tok)
    if m: tok = m.group(1)
    m = re.fullmatch(r'([vas])\[(\d+):(\d+)\]', tok)
    if m:
        return [f"{m.group(1)}{i}" for i in range(int(m.group(2)), int(m.group(3)) + 1)]
    m = re.fullmatch(r'([vas])(\d+)', tok)
    if m: return [tok]
    if tok in ('vcc',): return ['vcc']
    if tok in ('exec',): return ['exec']
    if tok in ('m0', 'scc'): return [tok]
    return []

def split_ops(s):
    out, depth, cur = [], 0, ''
    for ch in s:
        if ch == '[' or ch == '(': depth += 1
        if ch == ']' or ch == ')': depth -= 1
        if ch == ',' and depth == 0:
            out.append(cur.strip()); cur = ''
        else: cur += ch
    if cur.strip(): out.append(cur.strip())
    return out

TRANS = ('v_exp_f32', 'v_log_f32', 'v_rcp_f32', 'v_rsq_f32', 'v_sqrt_f32')

class I:
    __slots__ = ('text', 'op', 'kind', 'rd', 'wr', 'tag', 'note')
    def __init__(self, text, tag=None):
        self.text = text; self.tag = tag
        t = text.split(';')[0].strip()
        if t.endswith(':') or t.startswith('.'):
            self.op = t; self.kind = 'label' if t.endswith(':') else 'directive'; self.rd = []; self.wr = []; return
        parts = t.split(None, 1)
        op = parts[0]; self.op = op
        rest = parts[1] if len(parts) > 1 else ''
        ops = split_ops(rest)
        if ops:
            last = ops[-1].split()
            ops[-1] = last[0] if last else ''
            mods = last[1:]
        else: mods = []
        R = lambda k: regs_of(ops[k]) if k < len(ops) else []
        rd, wr = [], []
        if op.startswith('v_mfma'):
            self.kind = 'mfma'; wr = R(0); rd = R(1) + R(2) + R(3)
        elif op.startswith('ds_read'):
            self.kind = 'ds_read'; wr = R(0); rd = R(1)
        elif op.startswith('ds_write'):
            self.kind = 'ds_write'; rd = R(0) + R(1) + R(2)
        elif op.startswith('ds_bpermute') or op.startswith('ds_permute'):
            self.kind = 'ds_read'; wr = R(0); rd = R(1) + R(2)
        elif op.startswith('ds_swizzle'):
            self.kind = 'ds_read'; wr = R(0); rd = R(1)
        elif op.startswith('global_load_lds'):
            self.kind = 'dma'; rd = R(0) + R(1) + ['m0']
        elif op.startswith('global_load'):
            self.kind = 'vload'; wr = R(0); rd = R(1) + R(2)
        elif op.startswith('global_store'):
            self.kind = 'vstore'; rd = R(0) + R(1) + R(2)
        elif op.startswith('global_atomic'):
            self.kind = 'vstore'
            if 'sc0' in mods: wr = R(0); rd = R(1) + R(2) + R(3)
            else: rd = R(0) + R(1) + R(2)
        elif op.startswith('buffer_load'):
            if 'lds' in mods or (ops and ops[-1] == 'lds'):
                self.kind = 'dma'; rd = R(0) + R(1) + R(2) + ['m0']
            else:
                self.kind = 'vload'; wr = R(0); rd = R(1) + R(2) + R(3)
        elif op.startswith('buffer_store'):
            self.kind = 'vstore'; rd = R(0) + R(1) + R(2) + R(3)
        elif op in ('buffer_inv', 'buffer_wbl2'):
            self.kind = 'vstore'
        elif op.startswith('s_load'):
            self.kind = 'smem'; wr = R(0); rd = R(1)
        elif op in ('s_memtime', 's_memrealtime'):
            self.kind = 'smem'; wr = R(0)
        elif op == 's_waitcnt':
            self.kind = 'wait'
        elif op == 's_barrier':
            self.kind = 'barrier'
        elif op == 's_nop':
            self.kind = 'nop'
        elif op in ('s_endpgm', 's_sleep', 's_setprio'):
            self.kind = 'misc'
        elif op.startswith('s_cbranch') or op == 's_branch':
            self.kind = 'branch'
            if 'scc' in op: rd = ['scc']
            if 'vcc' in op: rd = ['vcc']
            if 'exec' in op: rd = ['exec']
        elif op == 's_getreg_b32':
            self.kind = 'salu'; wr = R(0)
        elif op.startswith('s_cmp') or op.startswith('s_bitcmp'):
            self.kind = 'salu'; rd = R(0) + R(1); wr = ['scc']
        elif op.startswith('s_'):
            self.kind = 'salu'; wr = R(0); rd = []
            for k in range(1, len(ops)): rd += R(k)
            if op in ('s_addc_u32', 's_subb_u32', 's_cselect_b32', 's_cselect_b64'): rd += ['scc']
            if op.split('_')[1] in ('add', 'addc', 'sub', 'subb', 'and', 'or', 'xor', 'lshl', 'lshr', 'andn2', 'min', 'max', 'addk', 'not', 'ashr', 'bfe', 'lshl1', 'lshl2', 'lshl3', 'lshl4'):
                wr = wr + ['scc']
            if op in ('s_addk_i32', 's_mulk_i32'): rd += R(0)
            if 'saveexec' in op: wr = wr + ['exec']; rd += ['exec']
            if op in ('s_getreg_b32',): rd = []
            if op == 's_setpc_b64': wr = []; rd = R(0); self.kind = 'branch'
        elif op.startswith('v_cmp'):
            self.kind = 'valu'; wr = R(0); rd = R(1) + R(2)
        elif op.startswith('v_'):
            self.kind = 'trans' if op.replace('_e32', '').replace('_e64', '') in TRANS else 'valu'
            wr = R(0); rd = []
            start = 1
            if op.startswith(('v_add_co', 'v_sub_co', 'v_addc_co', 'v_subb_co')):
                wr = R(0) + R(1); start = 2
            for k in range(start, len(ops)): rd += R(k)
            if op.startswith(('v_fmac', 'v_mac', 'v_dot2c', 'v_writelane')): rd += R(0)
            if op.startswith('v_permlane') and 'swap' in op:
                wr = R(0) + R(1); rd = R(0) + R(1)
            if op.startswith('v_cndmask') and len(ops) == 3: rd += ['vcc']
            if 'dpp' in op or any(m.startswith(('quad_perm', 'row_', 'wave_')) for m in mods):
                self.note = 'dpp'
                rd += R(0) if 'bound_ctrl:0' not in mods and 'bound_ctrl:1' not in mods else []
        else:
            raise ValueError("unknown op " + text)
        self.rd = rd; self.wr = wr

def is_dpp(i):
    return ('quad_perm' in i.text or 'row_' in i.text or 'wave_' in i.text or '_dpp' in i.op) and i.op.startswith('v_') and not i.op.startswith('v_mfma')

class Prog:
    def __init__(self):
        self.ins = []
    def e(self, text, tag=None):
        for ln in text.split('\n'):
            ln = ln.strip()
            if ln and not ln.startswith(';'):
                self.ins.append(I(ln, tag))
        return self
    def ext(self, L):
        for x in L:
            if isinstance(x, I): self.ins.append(x)
            else: self.e(x)
    def text(self):
        out = []
        for i in self.ins:
            out.append(i.text if i.kind in ('label', 'directive') else '  ' + i.text)
        return '\n'.join(out) + '\n'

VALU = ('valu', 'trans')
def mfma_passes(op):
    if '32x32x16' in op: return 8
    if '16x16x32' in op: return 4
    raise ValueError(op)

def check_hazards(ins, name=''):
    probs = []
    real = [i for i in ins if i.kind not in ('label', 'directive')]
    n = len(real)
    pos = []; p = 0
    for i in real:
        pos.append(p)
        if i.kind == 'nop':
            p += int(i.text.split()[1], 0) + 1
        else: p += 1
    last_mfma_wr = {}
    last_mfma_srcc = {}
    last_valu_wr = {}
    last_trans_wr = {}
    last_valu_sgpr = {}
    last_store_data = {}
    last_salu_m0 = None
    last_valu_exec = None
    for k, i in enumerate(real):
        def dist(j): return pos[k] - pos[j] - (int(real[j].text.split()[1], 0) + 1 if real[j].kind == 'nop' else 1)
        def need(j, d, why):
            if dist(j) < d:
                probs.append(f"{name}: [{why}] need {d} have {dist(j)}:\n    {real[j].text}\n    {i.text}")
        if i.kind == 'mfma':
            ops = split_ops(i.text.split(None, 1)[1])
            D = regs_of(ops[0]); A = regs_of(ops[1]); B = regs_of(ops[2]); C = regs_of(ops[3].split()[0])
            for r in A + B:
                if r in last_mfma_wr: need(last_mfma_wr[r], 8 if mfma_passes(real[last_mfma_wr[r]].op) == 4 else 12, 'mfma D->A/B')
            for r in A + B + C:
                if r in last_valu_wr: need(last_valu_wr[r], 2, 'valu->mfma')
            for r in C:
                if r in last_mfma_wr:
                    j = last_mfma_wr[r]; oj = split_ops(real[j].text.split(None, 1)[1])
                    if regs_of(oj[0]) != C: need(j, 6, 'mfma D->C overlap')
            for r in D:
                if r in last_mfma_wr and r not in C:
                    need(last_mfma_wr[r], 6, 'mfma WAW')
            if last_valu_exec is not None: need(last_valu_exec, 4, 'exec->mfma')
        else:
            touched_rd = i.rd
            for r in touched_rd:
                if r in last_mfma_wr and i.kind in VALU + ('ds_write', 'vstore', 'vload', 'dma', 'ds_read'):
                    need(last_mfma_wr[r], 8 if mfma_passes(real[last_mfma_wr[r]].op) == 4 else 12, 'mfma D->read')
            for r in i.wr:
                if r in last_mfma_wr and i.kind in VALU + ('ds_read', 'vload'):
                    need(last_mfma_wr[r], 8 if mfma_passes(real[last_mfma_wr[r]].op) == 4 else 12, 'mfma D->write')
                if r in last_mfma_srcc and i.kind in VALU:
                    need(last_mfma_srcc[r], 3 if mfma_passes(real[last_mfma_srcc[r]].op) == 4 else 7, 'mfma C WAR')
                if r in last_store_data and i.kind in VALU:
                    need(last_store_data[r], 2, 'store data WAR')
        if i.kind in VALU:
            for r in i.rd:
                if r in last_trans_wr and i.kind == 'valu': need(last_trans_wr[r], 1, 'trans->valu')
                if r in last_valu_sgpr and not i.op.startswith(('v_readlane', 'v_writelane')): need(last_valu_sgpr[r], 2, 'valu sgpr->valu')
                if is_dpp(i) and r in last_valu_wr: need(last_valu_wr[r], 2, 'valu->dpp')
                if i.op.startswith('v_permlane') and r in last_valu_wr: need(last_valu_wr[r], 2, 'valu->permlane')
                if i.op.startswith(('v_readlane', 'v_readfirstlane')) and r in last_valu_wr: need(last_valu_wr[r], 1, 'valu->readlane')
        if i.kind in ('vload', 'vstore', 'dma'):
            for r in i.rd:
                if r in last_valu_sgpr: need(last_valu_sgpr[r], 5, 'valu sgpr->vmem')
            if i.kind == 'dma' and last_salu_m0 is not None: need(last_salu_m0, 1, 'm0->dma')
        if i.kind in ('ds_write', 'vstore', 'vload', 'dma', 'ds_read'):
            for r in i.rd:
                if r in last_trans_wr: need(last_trans_wr[r], 1, 'trans->mem')
        if i.kind == 'salu' or i.kind == 'branch':
            for r in i.rd:
                if r in last_valu_sgpr and r != 'exec': need(last_valu_sgpr[r], 1 if i.kind == 'salu' else 5, 'valu sgpr->salu (conservative)')
        if i.kind == 'mfma':
            ops = split_ops(i.text.split(None, 1)[1])
            for r in regs_of(ops[0]): last_mfma_wr[r] = k
            for r in regs_of(ops[3].split()[0]): last_mfma_srcc[r] = k
            for r in regs_of(ops[0]):
                last_valu_wr.pop(r, None); last_trans_wr.pop(r, None)
        else:
            for r in i.wr:
                last_mfma_wr.pop(r, None) if i.kind in VALU + ('ds_read', 'vload') else None
                if i.kind in VALU:
                    if r[0] in 'va' and r not in ('vcc',): last_valu_wr[r] = k
                    else: last_valu_sgpr[r] = k
                    if r == 'exec': last_valu_exec = k
                    if i.kind == 'trans': last_trans_wr[r] = k
                    else: last_trans_wr.pop(r, None)
                else:
                    last_valu_wr.pop(r, None); last_trans_wr.pop(r, None); last_valu_sgpr.pop(r, None)
                if i.kind == 'salu' and r == 'm0': last_salu_m0 = k
            if i.kind == 'vstore' and ('x4' in i.op or 'x3' in i.op):
                ops = split_ops(i.text.split(None, 1)[1])
                data = regs_of(ops[1]) if i.op.startswith('global') else regs_of(ops[0])
                for r in data: last_store_data[r] = k
    return probs

def check_scc(ins, name=''):
    probs = []; last = None
    for i in ins:
        if i.kind in ('label', 'directive'): continue
        if 'scc' in i.rd:
            ok = False
            if last is not None:
                if i.op == 's_addc_u32': ok = last.op == 's_add_u32' and regs_of(split_ops(last.text.split(None,1)[1])[0])[0][1:] == str(int(regs_of(split_ops(i.text.split(None,1)[1])[0])[0][1:]) - 1)
                elif i.op == 's_subb_u32': ok = last.op == 's_sub_u32'
                else: ok = last.op.startswith(('s_cmp', 's_bitcmp'))
            if not ok: probs.append(f"{name}: [scc] {last.text if last else None} -> {i.text}")
        if 'scc' in i.wr: last = i
    return probs

def check_ptrs(ins, name='', lo=None, hi=None):
    probs = []; lo = set(lo or ()); hi = set(hi or ())
    for i in ins:
        if i.kind in ('label', 'directive'): continue
        ops = split_ops(i.text.split(';')[0].strip().split(None, 1)[1]) if ' ' in i.text.strip() else []
        if i.op.startswith('global_'):
            pair = None
            for o in ops:
                m = re.match(r's\[(\d+):(\d+)\]', o)
                if m: pair = (f"s{m.group(1)}", f"s{m.group(2)}")
            if pair is None: probs.append(f"{name}: [ptr] no scalar base: {i.text}")
            elif pair[0] not in lo or pair[1] not in hi: probs.append(f"{name}: [ptr] base is not a pointer: {i.text}")
        if i.op == 's_getpc_b64':
            a, b = i.wr; lo.add(a); hi.add(b); continue
        if i.op == 's_and_b32' and i.wr[0] in lo and i.wr[0] in i.rd: continue
        if i.op == 's_load_dwordx2':
            a, b = i.wr; lo.add(a); hi.add(b); lo.discard(b); hi.discard(a); continue
        if i.op == 's_mov_b64' and len(i.wr) == 2 and len(i.rd) == 2:
            a, b = i.wr; c, d = i.rd
            (lo.add if c in lo else lo.discard)(a); (hi.add if d in hi else hi.discard)(b); lo.discard(b); hi.discard(a); continue
        if i.op == 's_add_u32':
            d = i.wr[0]; t = any(r in lo for r in i.rd)
            (lo.add if t else lo.discard)(d); hi.discard(d); continue
        if i.op == 's_addc_u32':
            d = i.wr[0]; t = any(r in hi for r in i.rd)
            (hi.add if t else hi.discard)(d); lo.discard(d); continue
        for r in i.wr: lo.discard(r); hi.discard(r)
    return probs, lo, hi

def check_m0(ins, name=''):
    probs = []; fresh = False; prev = None
    for i in ins:
        if 'm0' in i.wr: fresh = True
        if i.kind == 'dma':
            if not fresh:
                same = prev is not None and prev.tag == i.tag and prev.rd == i.rd
                if not same: probs.append(f"{name}: [m0 stale] {prev.text if prev else None} -> {i.text}")
            fresh = False; prev = i
    return probs

def parse_wait(text):
    vm = re.search(r'vmcnt\((\d+)\)', text); lg = re.search(r'lgkmcnt\((\d+)\)', text)
    return (int(vm.group(1)) if vm else None, int(lg.group(1)) if lg else None)

def check_waits(ins, name=''):
    probs = []
    vm_q = []
    lg_q = []
    for i in ins:
        if i.kind in ('label', 'directive'): continue
        if i.kind == 'wait':
            vm, lg = parse_wait(i.text)
            if vm is not None:
                while len(vm_q) > vm: vm_q.pop(0)
            if lg is not None:
                if any(x[0].kind == 'smem' for x in lg_q):
                    if lg == 0: lg_q.clear()
                else:
                    while len(lg_q) > lg: lg_q.pop(0)
            continue
        touched = set(i.rd) | set(i.wr)
        for q, nm in ((vm_q, 'vm'), (lg_q, 'lgkm')):
            for (j, regs) in q:
                hit = touched & regs
                if hit and not (j is i):
                    if set(i.rd) & regs or i.kind not in ('ds_read', 'vload') or (i.kind == 'ds_read') != (j.kind == 'ds_read'):
                        probs.append(f"{name}: [{nm} not waited] {sorted(hit)[:4]}\n    {j.text}\n    {i.text}")
        if i.kind in ('vload', 'vstore', 'dma'):
            vm_q.append((i, set(i.wr)))
            if len(vm_q) > 63: pass
        if i.kind in ('ds_read', 'ds_write', 'smem'):
            lg_q.append((i, set(i.wr)))
    return probs

class VmTracker:
    def __init__(self): self.ops = []
    def issue(self, tag): self.ops.append(tag)
    def count_after(self, tag):
        for k in range(len(self.ops) - 1, -1, -1):
            if self.ops[k] == tag: return len(self.ops) - 1 - k
        raise KeyError(tag)

COND_TAGS = {'SF', 'ZF', 'HSTC'}
def auto_waits(ins):
    vm, lg = [], []
    for i in ins:
        if i.kind in ('vload', 'vstore', 'dma'): vm.append(i.tag)
        elif i.kind in ('ds_read', 'ds_write'): lg.append(i.tag)
        elif i.kind == 'wait' and i.tag is not None:
            want = i.tag
            parts = []
            for nm, q, mx in (('vm', vm, 63), ('lg', lg, 15)):
                if nm in want:
                    tags = want[nm]
                    if tags == 0 or tags is True:
                        n = 0
                    else:
                        if not isinstance(tags, (list, tuple, set)): tags = [tags]
                        idx = [k for k, t in enumerate(q) if t in tags]
                        if not idx:
                            continue
                        n = sum(1 for t in q[max(idx) + 1:] if t not in COND_TAGS)
                    if n > mx: n = mx
                    parts.append(('vmcnt' if nm == 'vm' else 'lgkmcnt') + f"({n})")
                    if n == mx and tags not in (0, True):
                        real_n = n
                        if real_n > mx and nm == 'lg':
                            pass
            i.text = 's_waitcnt ' + ' '.join(parts) if parts else 's_nop 0'
            if not parts: i.kind = 'nop'
    return ins

def W(vm=None, lg=None):
    t = {}
    if vm is not None: t['vm'] = vm
    if lg is not None: t['lg'] = lg
    i = I('s_waitcnt vmcnt(0)', tag=t)
    return i
```

```python
from common import *

V_LANE = 1
V_KVR  = 2
V_L16  = 4
V_NEGM = 56
V_L    = 60
V_S    = 64
V_P    = 80
V_BIG  = 88
V_T    = 89
V_CI   = 96
V_O    = 128
A_Q, A_K, A_V = 0, 64, 128
def O(db, slot): return V_O + (db * 4 + slot) * 4
def CI(slot, kb): return V_CI + slot * 8 + kb * 4
def QF(slot, t): return A_Q + (slot * 4 + t) * 4
def KF(buf, kb, t): return A_K + buf * 32 + (kb * 4 + t) * 4
def VF(buf, db): return A_V + buf * 32 + db * 4
def Sreg(q, kb): return V_S + (q & 1) * 8 + kb * 4
def Preg(q): return V_P + (q & 1) * 4

KVBUF0 = 98304
KVXOR = 0x10000

S_W = 22
S_KVG = 34
S_KVM0 = 36
S_DT = 38
S_MASK = 44
S_CNT = 52

def softmax_instrs(q, slot):
    regs = [Sreg(q, kb) + r for kb in range(2) for r in range(4)]
    ex = [f"v_exp_f32 v{r}, v{r}" for r in regs]
    ad = [f"v_add_f32 v{V_L+slot}, v{V_L+slot}, v{r}" for r in regs]
    cv = [f"v_cvt_pk_bf16_f32 v{Preg(q)+k}, v{regs[2*k]}, v{regs[2*k+1]}" for k in range(4)]
    return ex, ad, cv

def qk_group(st, q, slot, kbuf):
    g0 = None
    for kb in range(2):
        for t in range(4):
            d = vr(Sreg(q, kb))
            c = vr(CI(slot, kb)) if t == 0 else d
            g = st.mfma(f"{MF} {d}, {ar(KF(kbuf, kb, t))}, {ar(QF(slot, t))}, {c}")
            if g0 is None: g0 = g
    return g0

def pv_group(st, q, slot, vbuf):
    for db in range(8):
        o = vr(O(db, slot))
        st.mfma(f"{MF} {o}, {ar(VF(vbuf, db))}, {vr(Preg(q))}, {o}")

def kv_reads(step_in_stage, buf):
    base = step_in_stage * 16384
    K = [I(f"ds_read_b128 {ar(KF(buf, kb, t))}, v{V_KVR} offset:{base + (kb*4+t)*1024}", tag=('K', buf)) for kb in range(2) for t in range(4)]
    V = [I(f"ds_read_b128 {ar(VF(buf, db))}, v{V_KVR} offset:{base + 8192 + db*1024}", tag=('V', buf)) for db in range(8)]
    return K, V

def dma_burst(j):
    sc = [f"s_add_u32 s{S_DT}, s{S_KVG}, {j*16384}", f"s_addc_u32 s{S_DT+1}, s{S_KVG+1}, 0", f"s_add_u32 m0, s{S_KVM0}, {j*16384}"]
    d = [I(f"global_load_lds_dwordx4 v{V_L16}, {sr(S_DT)} offset:{k*1024} SC", tag='KVD') for k in range(4)]
    return sc, d

def mask_hook(slots, j, lab):
    e, o = slots
    L = [f"s_cmp_eq_u32 s{S_W}, {j}", f"s_cbranch_scc0 {lab}_a"]
    for r in range(4):
        L.append(f"v_cndmask_b32 v{CI(e,0)+r}, v{V_BIG}, v{V_NEGM+e}, s[{S_MASK+2*r}:{S_MASK+2*r+1}]")
    for r in range(4): L.append(f"v_mov_b32 v{CI(e,1)+r}, v{V_BIG}")
    for r in range(4):
        L.append(f"v_cndmask_b32 v{CI(o,1)+r}, v{V_BIG}, v{V_NEGM+o}, s[{S_MASK+2*r}:{S_MASK+2*r+1}]")
    L.append(f"{lab}_a:")
    if j >= 1:
        L += [f"s_cmp_eq_u32 s{S_W}, {j-1}", f"s_cbranch_scc0 {lab}_b"]
        for r in range(4): L.append(f"v_mov_b32 v{CI(e,0)+r}, v{V_BIG}")
        for r in range(4): L.append(f"v_mov_b32 v{CI(o,0)+r}, v{V_BIG}")
        for r in range(4): L.append(f"v_mov_b32 v{CI(o,1)+r}, v{V_BIG}")
        L.append(f"{lab}_b:")
    L.append("s_nop 1")
    return L

def stage_body(nq, diag_slots, lab, sc_kv="", prefetch=True, last=False):
    st = Stream(cap=2)
    G = 8 * 2 * nq
    soft = []
    for j in range(4):
        buf = j & 1
        for q in range(nq):
            g0 = qk_group(st, q, q, buf)
            soft.append((g0, q, q))
            pq = (q - 1) % nq
            pv_group(st, pq, pq, (j - 1) & 1 if q == 0 else buf)
    n = len(st.spine)
    pend = {}
    for (g0, q, slot) in soft:
        ex, ad, cv = softmax_instrs(q, slot)
        for k in range(8):
            pend.setdefault((g0 + 7 + 2*k) % n, []).append(('e', ex[k]))
            pend.setdefault((g0 + 8 + 2*k) % n, []).append(('a', ad[k]))
        for k in range(4):
            pend.setdefault((g0 + 10 + 4*k) % n, []).append(('c', cv[k]))
    for j in range(4):
        if last and j == 3: continue
        K, V = kv_reads((j + 1) % 4, (j + 1) & 1)
        R = K + V
        if nq == 4: gaps = [j*G + 4*k for k in range(16)]
        else: gaps = [j*G + 2*k for k in range(16)]
        for r, g in zip(R, gaps): pend.setdefault(g, []).append(('r', r))
    order = {'r': 0, 'c': 1, 'e': 2, 'a': 3}
    pre = {g: [] for g in range(n)}
    for j in range(4):
        if not (last and j == 3): pre[j*G + G - 1].append(W(lg=[('K', (j + 1) & 1)]))
        pre[j*G + 23].append(W(lg=[('V', j & 1)]))
    g3 = 3 * G
    switch = [W(vm=True, lg=True), I("s_barrier"), I(f"v_xor_b32 v{V_KVR}, {KVXOR}, v{V_KVR}")]
    bursts = {}
    if prefetch:
        for j in range(4):
            g = g3 + 4 + j * (G // 4)
            bursts[g] = j
            scs, _ = dma_burst(j)
            for k in range(3):
                assert not pre[g - 3 + k]
                pre[g - 3 + k].append(I(scs[k]))
    out = []
    for g in range(n):
        j, gi = divmod(g, G)
        out.append(st.spine[g])
        items = sorted(pend.get(g, []), key=lambda t: order[t[0]])
        body = [x if isinstance(x, I) else I(x) for _, x in items]
        if g == g3 - 1 and not last:
            body = body + switch
        head = list(pre[g])
        if g in bursts:
            _, ds = dma_burst(bursts[g])
            ds = [I(d.text.replace('SC', sc_kv).strip(), tag=d.tag) for d in ds]
            head += [I(f"s_cmp_lg_u32 s{S_CNT}, 0"), I(f"s_cbranch_scc0 {lab}_nb{bursts[g]}")] + ds + [I(f"{lab}_nb{bursts[g]}:")]
        out += head + body
        if diag_slots is not None and nq == 4 and gi == 0:
            out += [I(x) for x in mask_hook(diag_slots, j, f"{lab}_m{j}")]
        if diag_slots is not None and nq == 2 and gi == G - 1 and j < 3:
            out += [I(x) for x in mask_hook(diag_slots, j + 1, f"{lab}_m{j+1}")]
    if prefetch:
        out += [I(f"s_add_u32 s{S_KVG}, s{S_KVG}, 65536"), I(f"s_addc_u32 s{S_KVG+1}, s{S_KVG+1}, 0"),
                I(f"s_xor_b32 s{S_KVM0}, s{S_KVM0}, {KVXOR}"),
                I(f"s_max_u32 s{S_CNT}, s{S_CNT}, 1"), I(f"s_sub_u32 s{S_CNT}, s{S_CNT}, 1")]
    return out

def resolve_loop(body, prev=None):
    import copy
    a = [copy.copy(i) for i in (prev if prev is not None else body)]
    auto_waits(a + body)
    return body

def tail(nq):
    q = nq - 1
    ex, ad, cv = softmax_instrs(q, q)
    L = ["s_nop 0", ad[4], ex[5], "s_nop 0", cv[2], ad[5], ex[6], "s_nop 0", ad[6], ex[7], "s_nop 0", cv[3], ad[7], "s_nop 1"]
    out = [I(x) for x in L]
    out.append(W(lg=True))
    for db in range(8):
        o = vr(O(db, q))
        out.append(I(f"{MF} {o}, {ar(VF(1, db))}, {vr(Preg(q))}, {o}"))
    return out
```

```python
import struct
import proj
from proj import Chunk, ProjStream, setup_tr_addr, setup_w_voff, xfrag, RING, XST
import attn as A
from common import *
from k_ln import reduce64

def f32hex(x): return hex(struct.unpack('<I', struct.pack('<f', x))[0])
QSCALE = f32hex(1.4426950408889634 / (128 ** 0.5))

S_CKV, S_WUK, S_WUV, S_KV, S_WS, S_W1, S_W3, S_WQ = 4, 6, 8, 10, 12, 14, 16, 18
S_H, S_J, S_W, S_M0W = 20, 21, 22, 23
S_TMP = 24
S_ST = 28
S_XB, S_NU = 32, 33
S_HB = 54
S_QB = 56
S_XN = 60
S_CX = 62
S_DBG = 64
S_X = 66
S_FL = 68
S_LOOP = 53
S_ROT = 72
S_ROT1 = 50
S_RT = 42
S_XA = 44
S_XCC = 3
S_FAST = 73
S_HAS3 = 37
S_ODD = 48
S_SPIN = 70
S_OKA = 3333
S_NON = 71
STAMP0 = 74
FL_KV  = 0
FL_H   = 4096
FL_CX  = 8192
FL_PT  = 16384
FL_XI  = 32768
FL_XN  = 36864
SC = "sc1"
SPIN_MAX = 200000
OPT = {}

V_LANE = proj.V_LANE
V_ST = proj.V_ST
V_STG = proj.V_STG
V_OFFX = proj.V_OFFX
V_XOFF, V_HOFF = 48, 52
V_TMP4 = 56
V_FLG = 60
V_F7 = 7

def lane0(p, body):
    p.e("s_mov_b64 exec, 1")
    p.ext(body)
    p.e("s_mov_b64 exec, -1")

def setup(p):
    p.e(f"""
    s_load_dwordx2 {sr(S_X)}, s[0:1], {KA['x']}
    s_load_dwordx2 {sr(S_CKV)}, s[0:1], {KA['ckv']}
    s_load_dwordx2 {sr(S_WUK)}, s[0:1], {KA['wuk']}
    s_load_dwordx2 {sr(S_WUV)}, s[0:1], {KA['wuv']}
    s_load_dwordx2 {sr(S_WS)}, s[0:1], {KA['ws']}
    s_load_dwordx2 {sr(S_W1)}, s[0:1], {KA['w1']}
    s_load_dwordx2 {sr(S_W3)}, s[0:1], {KA['w3']}
    s_load_dwordx2 {sr(S_WQ)}, s[0:1], {KA['wq']}
    s_load_dwordx2 {sr(S_DBG)}, s[0:1], {KA['dbg']}
    """)
    wg_decode(p, S_H, S_J, S_W, V_LANE)
    vl = V_LANE
    p.e(f"""
    s_getreg_b32 s{S_XCC}, hwreg(HW_REG_XCC_ID, 0, 4)
    s_and_b32 s{S_XCC}, s{S_XCC}, 7
    s_and_b32 s40, s{S_H}, 3
    s_lshl_b32 s40, s40, 1
    s_add_u32 s40, s40, s{S_J}
    s_lshl_b32 s40, s40, 1
    s_and_b32 s{S_ROT}, s40, {15 if OPT.get('rot', 1) else 0}
    s_and_b32 s{S_ROT1}, s40, {15 if OPT.get('rot1', 0) else 0}
    s_mov_b32 s{S_FAST}, 0
    v_lshlrev_b32 v{V_ST}, 4, v{vl}
    """)
    setup_w_voff(p, proj.V_OFFW, vl, S_W, 8192, 60, 61, 40)
    p.e(f"""
    v_lshrrev_b32 v60, 3, v{vl}
    v_lshrrev_b32 v61, 1, v60
    v_and_b32 v62, 7, v{vl}
    v_xor_b32 v63, v62, v61
    v_lshlrev_b32 v63, 4, v63
    v_lshlrev_b32 v60, 10, v60
    v_add_u32 v{V_OFFX}, v63, v60
    v_or_b32 v61, 4, v61
    v_xor_b32 v63, v62, v61
    v_lshlrev_b32 v63, 4, v63
    v_add_u32 v{V_OFFX+1}, v63, v60
    v_add_u32 v{V_OFFX+1}, 0x2000, v{V_OFFX+1}
    """)
    for i in range(2, 8):
        p.e(f"v_add_u32 v{V_OFFX+i}, {0x4000*(i//2)}, v{V_OFFX+(i&1)}")
    p.e(f"""
    s_lshl_b32 s{S_XB}, s{S_W}, 14
    s_add_u32 s{S_XB}, s{S_XB}, {XST}
    s_lshl_b32 s{S_M0W}, s{S_W}, 10
    s_lshl_b32 s40, s2, 3
    s_lshl_b32 s41, s{S_W}, 1
    s_add_u32 s40, s40, s41
    s_lshl_b32 s40, s40, 10
    v_add_u32 v8, s40, v{V_ST}
    s_waitcnt lgkmcnt(0)
    """)
    p.ext([I(f"global_load_dwordx4 v[12:15], v8, {sr(S_X)}", tag='LNX'), I(f"global_load_dwordx4 v[16:19], v8, {sr(S_X)} offset:1024", tag='LNX')])
    p.e(f"""
    s_mov_b64 s[28:29], {sr(S_CKV)}
    s_mov_b64 s[30:31], {sr(S_WUK)}
    s_mov_b64 s[38:39], {sr(S_WUV)}
    s_lshl_b32 s40, s{S_J}, 8
    s_lshl_b32 s41, s{S_W}, 6
    s_add_u32 s40, s40, s41
    s_lshl_b32 s40, s40, 10
    """)
    add64s(p, S_CKV, S_CKV, 40)
    p.e(f"s_lshl_b32 s40, s{S_H}, 8")
    add64s(p, S_WUK, S_WUK, 40); add64s(p, S_WUV, S_WUV, 40); add64s(p, S_WQ, S_WQ, 40)

def prefetch_code(p, nbytes):
    lines = (nbytes + 127) // 128
    per = (lines + 31) // 32
    assert per <= 64
    p.e(f"""
    s_getpc_b64 s[40:41]
    L_pc0:
    s_and_b32 s40, s40, 0xffffff00
    s_lshr_b32 s42, s2, 3
    s_mul_i32 s42, s42, {per}
    v_add_u32 v56, s42, v{V_LANE}
    v_min_u32 v56, {lines-1}, v56
    v_lshlrev_b32 v56, 7, v56
    s_cmp_eq_u32 s{S_W}, 3
    s_cbranch_scc0 L_pc1
    """)
    p.ext([I("global_load_dword v59, v56, s[40:41]", tag='SF')])
    p.e("L_pc1:")

def prefetch_t1_setup(p):
    p.e(f"""
    s_lshr_b32 s40, s2, 3
    s_lshl_b32 s41, s40, 6
    v_add_u32 v56, s41, v{V_LANE}
    v_lshlrev_b32 v56, 10, v56
    s_lshl_b32 s41, s40, 4
    v_and_b32 v57, 15, v{V_LANE}
    v_add_u32 v57, s41, v57
    v_lshlrev_b32 v57, 13, v57
    v_lshrrev_b32 v58, 4, v{V_LANE}
    s_and_b32 s41, s2, 7
    s_lshl_b32 s41, s41, 2
    v_add_u32 v58, s41, v58
    v_lshlrev_b32 v58, 8, v58
    v_add_u32 v57, v57, v58
    """)

def touch(kind, a, s_ckv0=28, s_wuk0=30, s_wuv0=38):
    if kind == 'c': return I(f"global_load_dword v59, v56, {sr(s_ckv0)} offset:{a*128}", tag='SF')
    return I(f"global_load_dword v59, v57, {sr(s_wuk0 if kind == 'k' else s_wuv0)} offset:{a*128}", tag='SF')

def touch_setup_xn():
    return (f"s_and_b32 s40, s{S_H}, 3", "s_lshl_b32 s40, s40, 15", f"v_lshlrev_b32 v58, 7, v{V_LANE}", "v_add_u32 v58, s40, v58")
def touch_xn(tileB, n):
    t = S_XA
    a = [f"s_sub_u32 s40, 15, s{S_J}"] if tileB else [f"s_mov_b32 s40, s{S_J}"]
    return tuple(a + ["s_lshl_b32 s40, s40, 17", f"s_add_u32 s40, s40, {n*8192}", f"s_add_u32 s{t}, s{S_XN}, s40", f"s_addc_u32 s{t+1}, s{S_XN+1}, 0",
                      I(f"global_load_dword v59, v58, {sr(t)}", tag='SF')])
def touch_setup_f():
    return (f"s_lshl_b32 s40, s{S_J}, 6", f"v_add_u32 v57, s40, v{V_LANE}", "s_mov_b32 s40, 2752", "v_mul_lo_u32 v56, v57, s40",
            "v_lshlrev_b32 v57, 13, v57", f"s_lshl_b32 s40, s{S_NU}, 4", "v_add_u32 v58, s40, v56")

_pfn = [0]
def prefetch_t1(p, jobs, w0=0):
    _pfn[0] += 1
    for w in range(4):
        mine = [j for n, j in enumerate(jobs) if (n + w0) % 4 == w]
        if not mine: continue
        p.e(f"s_cmp_eq_u32 s{S_W}, {w}\ns_cbranch_scc0 L_pf{_pfn[0]}_{w}")
        for (kind, a) in mine: p.ext([touch(kind, a)])
        p.e(f"L_pf{_pfn[0]}_{w}:")

def setup2(p):
    vl = V_LANE
    p.e(f"""
    s_lshl_b32 s40, s{S_H}, 6
    s_lshl_b32 s41, s{S_J}, 3
    s_add_u32 s40, s40, s41
    s_lshl_b32 s41, s{S_W}, 1
    s_add_u32 s40, s40, s41
    s_lshl_b32 s40, s40, 14
    s_add_u32 s40, s40, {WS_KV}
    """)
    add64s(p, S_KV, S_WS, 40)
    add64(p, S_XN, S_WS, WS_XN)
    add64(p, S_FL, S_WS, WS_FLAG)
    p.e(f"""
    s_mul_i32 s42, s{S_H}, 3
    s_lshl_b32 s40, s{S_H}, 1
    s_add_u32 s40, s40, 22
    s_cmp_lt_u32 s{S_H}, 22
    s_cselect_b32 s42, s42, s40
    s_cselect_b32 s{S_HAS3}, 1, 0
    s_cselect_b32 s{S_NU}, 5, 3
    s_and_b32 s41, s42, 1
    s_lshl_b32 s{S_ODD}, s41, 5
    s_mul_i32 s{S_ODD+1}, s41, 96
    s_lshl_b32 s40, s41, 1
    s_add_u32 s{S_NU}, s{S_NU}, s40
    s_sub_u32 s40, s42, s41
    s_lshl_b32 s40, s40, 5
    """)
    add64s(p, S_W1, S_W1, 40); add64s(p, S_W3, S_W3, 40)
    p.e(f"s_lshl_b32 s40, s42, 9\ns_add_u32 s40, s40, {WS_H}")
    add64s(p, S_HB, S_WS, 40)
    p.e(f"s_lshl_b32 s40, s{S_H}, 12\ns_add_u32 s40, s40, {WS_CTX}")
    add64s(p, S_CX, S_WS, 40)
    p.e(f"""
    s_lshl_b32 s40, s{S_H}, 20
    s_lshl_b32 s41, s{S_W}, 12
    s_add_u32 s40, s40, s41
    s_add_u32 s40, s40, {WS_KV}
    """)
    add64s(p, A.S_KVG, S_WS, 40)
    p.e(f"""
    s_add_u32 s{A.S_KVM0}, s41, {A.KVBUF0}
    s_sub_u32 s40, 15, s{S_J}
    s_lshl_b32 s40, s40, 3
    s_lshl_b32 s41, s{S_W}, 1
    s_add_u32 s{S_QB}, s40, s41
    s_add_u32 s{S_QB+1}, s{S_QB}, 1
    s_lshl_b32 s40, s{S_J}, 3
    s_add_u32 s{S_QB+2}, s40, s41
    s_add_u32 s{S_QB+3}, s{S_QB+2}, 1
    """)

def nonce_publish(p):
    p.e(f"s_or_b32 s40, s2, s{S_W}\ns_cmp_eq_u32 s40, 0\ns_cbranch_scc0 L_np_skip")
    p.e(f"s_memrealtime s[40:41]\ns_waitcnt lgkmcnt(0)\ns_and_b32 s40, s40, 0xfffffff0\ns_or_b32 s40, s40, 8")
    lane0(p, [f"v_mov_b32 v{V_FLG}, 0", f"v_mov_b32 v{V_FLG+1}, s40", I(f"global_store_dword v{V_FLG}, v{V_FLG+1}, {sr(S_DBG)} {SC}", tag='SF')])
    p.e("L_np_skip:")

def nonce_issue():
    return [f"v_mov_b32 v{V_FLG+2}, 0", I(f"global_load_dword v{V_FLG+3}, v{V_FLG+2}, {sr(S_DBG)} {SC}", tag='NON')]

def nonce_check(spins):
    _lab[0] += 1; k = _lab[0]
    rd = ["s_nop 0", f"v_readfirstlane_b32 s{S_NON}, v{V_FLG+3}", "s_nop 0", f"s_cmp_lg_u32 s{S_NON}, 0"]
    spins += [f"L_spin{k}:", f"s_mov_b32 s{S_SPIN}, {SPIN_MAX}", f"L_spin{k}_l:", "s_sleep 4", f"v_mov_b32 v{V_FLG+2}, 0",
              f"global_load_dword v{V_FLG+3}, v{V_FLG+2}, {sr(S_DBG)} {SC}", "s_waitcnt vmcnt(0)"] + rd + \
             [f"s_cbranch_scc1 L_back{k}", f"s_sub_u32 s{S_SPIN}, s{S_SPIN}, 1", f"s_cmp_lg_u32 s{S_SPIN}, 0", f"s_cbranch_scc1 L_spin{k}_l", f"s_branch L_back{k}"]
    return tuple([W(vm=['NON'])] + rd + [f"s_cbranch_scc0 L_spin{k}", f"L_back{k}:"])

def flag_addr(kind, sel=None):
    if kind == 'kv':
        return [f"s_lshl_b32 s40, s{S_H}, 7", f"s_lshl_b32 s41, s{S_J}, 2", "s_add_u32 s40, s40, s41", f"s_add_u32 s40, s40, {FL_KV}"]
    if kind == 'h':
        return [f"s_lshl_b32 s40, s{S_J}, 7", f"s_lshl_b32 s41, s{S_H}, 2", "s_add_u32 s40, s40, s41", f"s_add_u32 s40, s40, {FL_H}"]
    if kind == 'cx':
        return [f"s_lshl_b32 s40, s{S_J}, 3", f"s_lshr_b32 s41, s{S_H}, 3", "s_add_u32 s40, s40, s41", f"s_add_u32 s40, s40, {sel*4}",
                "s_lshl_b32 s40, s40, 7", f"s_and_b32 s41, s{S_H}, 7", "s_lshl_b32 s41, s41, 2", "s_add_u32 s40, s40, s41", f"s_add_u32 s40, s40, {FL_CX}"]
    if kind == 'xi':
        return [f"s_lshl_b32 s40, s{S_H}, 7", f"s_lshl_b32 s41, s{S_J}, 2", "s_add_u32 s40, s40, s41", f"s_add_u32 s40, s40, {FL_XI}"]
    if kind == 'xn':
        return ["s_lshr_b32 s40, s2, 4", "s_lshl_b32 s40, s40, 7", "s_and_b32 s41, s2, 15", "s_lshl_b32 s41, s41, 2", "s_add_u32 s40, s40, s41", f"s_add_u32 s40, s40, {FL_XN}"]
    if kind == 'pt':
        return [f"s_lshl_b32 s40, s{S_J}, 3", f"s_and_b32 s41, s{S_H}, 7", "s_add_u32 s40, s40, s41", "s_lshl_b32 s40, s40, 7",
                f"s_lshr_b32 s41, s{S_H}, 3", "s_lshl_b32 s41, s41, 2", "s_add_u32 s40, s40, s41", f"s_add_u32 s40, s40, {FL_PT}"]

_lab = [0]
def set_flag_group(kind, sel=None):
    _lab[0] += 1; lab = f"L_sf{_lab[0]}"
    val = [f"s_or_b32 s41, s{S_NON}, s{S_XCC}", f"v_mov_b32 v{V_FLG+1}, s41"] if kind == 'xi' else [f"v_mov_b32 v{V_FLG+1}, s{S_NON}"]
    return tuple([f"s_cmp_eq_u32 s{S_W}, 0", f"s_cbranch_scc0 {lab}"] + flag_addr(kind, sel) + [f"v_mov_b32 v{V_FLG}, s40"] + val +
                 ["s_mov_b64 exec, 1", I(f"global_store_dword v{V_FLG}, v{V_FLG+1}, {sr(S_FL)} {SC}", tag='SF'), "s_mov_b64 exec, -1", f"{lab}:"])

def poll_issue(voff_setup):
    return tuple(voff_setup + [I(f"global_load_dword v{V_FLG+1}, v{V_FLG}, {sr(S_FL)} {SC}", tag='POLL')])

def poll_check(spins, die=False):
    _lab[0] += 1; k = _lab[0]
    if die:
        chk = [f"v_and_b32 v{V_FLG+2}, 0xfffffff8, v{V_FLG+1}", f"v_cmp_ne_u32 vcc, s{S_NON}, v{V_FLG+2}", "s_nop 3", "s_cmp_eq_u64 vcc, 0"]
        post = [f"s_or_b32 s41, s{S_NON}, s{S_XCC}", f"v_cmp_ne_u32 vcc, s41, v{V_FLG+1}", "s_nop 3", "s_cmp_eq_u64 vcc, 0",
                f"s_cselect_b32 s{S_FAST}, {0 if OPT.get('nofast') else 1}, 0"]
    else:
        chk = [f"v_cmp_ne_u32 vcc, s{S_NON}, v{V_FLG+1}", "s_nop 3", "s_cmp_eq_u64 vcc, 0"]; post = []
    spins += [f"L_spin{k}:", f"s_mov_b32 s{S_SPIN}, {SPIN_MAX}", f"L_spin{k}_l:", "s_sleep 8",
              f"global_load_dword v{V_FLG+1}, v{V_FLG}, {sr(S_FL)} {SC}", "s_waitcnt vmcnt(0)"] + chk + \
             [f"s_cbranch_scc1 L_back{k}", f"s_sub_u32 s{S_SPIN}, s{S_SPIN}, 1", f"s_cmp_lg_u32 s{S_SPIN}, 0", f"s_cbranch_scc1 L_spin{k}_l", f"s_branch L_back{k}"]
    return tuple([W(vm=['POLL'])] + chk + [f"s_cbranch_scc0 L_spin{k}", f"L_back{k}:"] + post)

def ln_compute(p, lds_base):
    for row, (src, f) in enumerate(((12, 20), (16, 28))):
        for k in range(4):
            p.e(f"v_lshlrev_b32 v{f+2*k}, 16, v{src+k}")
            p.e(f"v_and_b32 v{f+2*k+1}, 0xffff0000, v{src+k}")
    for row, f in enumerate((20, 28)):
        s = 36 + row
        p.e(f"v_add_f32 v{s}, v{f}, v{f+1}")
        for k in range(2, 8): p.e(f"v_add_f32 v{s}, v{s}, v{f+k}")
    def red2(a, b):
        for mod in ("quad_perm:[1,0,3,2]", "quad_perm:[2,3,0,1]", "row_half_mirror", "row_mirror"):
            p.e(f"s_nop 0\nv_add_f32_dpp v{a}, v{a}, v{a} {mod} row_mask:0xf bank_mask:0xf\nv_add_f32_dpp v{b}, v{b}, v{b} {mod} row_mask:0xf bank_mask:0xf")
        for sw in ("v_permlane16_swap_b32", "v_permlane32_swap_b32"):
            p.e(f"v_mov_b32 v40, v{a}\nv_mov_b32 v41, v{b}\ns_nop 0\n{sw} v{a}, v40\n{sw} v{b}, v41\ns_nop 0\nv_add_f32 v{a}, v{a}, v40\nv_add_f32 v{b}, v{b}, v41")
    p.e("s_nop 0"); red2(36, 37)
    for row, f in enumerate((20, 28)):
        s = 36 + row; q = 38 + row
        p.e(f"v_mul_f32 v{s}, 0x3b000000, v{s}")
        for k in range(8): p.e(f"v_sub_f32 v{f+k}, v{f+k}, v{s}")
        p.e(f"v_mul_f32 v{q}, v{f}, v{f}")
        for k in range(1, 8): p.e(f"v_fmac_f32 v{q}, v{f+k}, v{f+k}")
    p.e("s_nop 0"); red2(38, 39)
    for row, (src, f) in enumerate(((12, 20), (16, 28))):
        q = 38 + row
        p.e(f"v_mov_b32 v41, 0x3727c5ac\nv_fmac_f32 v41, 0x3b000000, v{q}\nv_rsq_f32 v41, v41\ns_nop 0")
        for k in range(8): p.e(f"v_mul_f32 v{f+k}, v{f+k}, v41")
        for k in range(4): p.e(f"v_cvt_pk_bf16_f32 v{src+k}, v{f+2*k}, v{f+2*k+1}")
    p.e(f"""
    s_lshl_b32 s41, s{S_W}, 5
    s_add_u32 s41, s41, {lds_base}
    v_lshlrev_b32 v8, 7, v{V_LANE}
    v_add_u32 v8, s41, v8
    ds_write_b128 v8, v[12:15]
    ds_write_b128 v8, v[16:19] offset:16
    v_lshrrev_b32 v9, 3, v0
    v_lshlrev_b32 v9, 8, v9
    v_and_b32 v10, 7, v0
    v_lshlrev_b32 v10, 4, v10
    v_add_u32 v9, v9, v10
    s_lshr_b32 s40, s2, 1
    s_lshl_b32 s40, s40, 14
    s_and_b32 s41, s2, 1
    s_lshl_b32 s41, s41, 7
    s_add_u32 s40, s40, s41
    v_add_u32 v9, s40, v9
    v_add_u32 v10, 0x2000, v9
    v_lshlrev_b32 v8, 4, v0
    v_add_u32 v8, {lds_base}, v8
    s_waitcnt lgkmcnt(0)
    s_barrier
    ds_read_b128 v[12:15], v8
    ds_read_b128 v[16:19], v8 offset:4096
    s_waitcnt lgkmcnt(0)
    """)
    p.ext([I(f"global_store_dwordx4 v9, v[12:15], {sr(S_XN)} {SC}", tag='XNST'), I(f"global_store_dwordx4 v10, v[16:19], {sr(S_XN)} {SC}", tag='XNST')])

def x_dma(kp, i):
    lds_off = (kp & 1) * 8192 + i * 1024
    t = S_XA + 2 * (kp & 1)
    pre = []
    if i == 0:
        pre = [f"s_lshr_b32 s{S_RT}, s{S_ROT1}, 1", f"s_add_u32 s{S_RT}, s{S_RT}, {kp}", f"s_and_b32 s{S_RT}, s{S_RT}, 7", f"s_lshl_b32 s{S_RT}, s{S_RT}, 7",
               f"s_add_u32 s{t}, s{S_CKV}, s{S_RT}", f"s_addc_u32 s{t+1}, s{S_CKV+1}, 0"]
    return (pre + [f"s_add_u32 m0, s{S_XB}, {lds_off}"],
            I(f"global_load_lds_dwordx4 v{V_OFFX+i}, {sr(t)}", tag=('X', kp)))
def x_reads(kp):
    return [I(f"ds_read_b128 {ar(xfrag(2*kp+e, b))}, v{proj.V_XR0 if e == 0 else proj.V_XR1} offset:{(kp&1)*8192 + b*2048}", tag=('XR', kp))
            for e in range(2) for b in range(4)]

accK  = lambda si, cb, b: 128 + ((si * 4 + cb) * 4 + b) * 4
accV0 = lambda si, cb, b: 64 + (cb * 4 + b) * 4
accV1 = lambda si, cb, b: 144 + cb * 32 + b * 4
_F_BLOCKS = [128 + db * 32 + b * 4 for db in range(4) for b in range(4)] + [64 + (cb * 4 + b) * 4 for cb in range(4) for b in (1, 3)]
accF  = lambda si, cb, b: _F_BLOCKS[(cb * 2 + si) * 4 + b]
_Q0_BLOCKS = [144 + cb * 32 + b * 4 for cb in range(4) for b in (1, 3)] + [64 + (cb * 4 + b) * 4 for cb in range(4) for b in (0, 2)]
_Q1_BLOCKS = _F_BLOCKS[0:8] + [144 + cb * 32 + b * 4 for cb in range(4) for b in (0, 2)]
accQ0 = lambda si, cb, b: _Q0_BLOCKS[cb * 4 + b]
accQ1 = lambda si, cb, b: _Q1_BLOCKS[cb * 4 + b]

def pack_pair(Aa, Bb, scale=False):
    L = []
    if scale: L += [f"v_mul_f32 v{R+r}, {QSCALE}, v{R+r}" for R in (Aa, Bb) for r in range(4)]
    L += [f"v_cvt_pk_bf16_f32 v{Aa}, v{Aa}, v{Aa+1}", f"v_cvt_pk_bf16_f32 v{Aa+1}, v{Aa+2}, v{Aa+3}",
          f"v_cvt_pk_bf16_f32 v{Aa+2}, v{Bb}, v{Bb+1}", f"v_cvt_pk_bf16_f32 v{Aa+3}, v{Bb+2}, v{Bb+3}"]
    return L

def kv_items(kind):
    out = []
    if kind == 'K':
        for b in range(4):
            win = (b >> 1) * 16384 + (b & 1) * 4096
            for t in range(4):
                out.append((win, t * 1024, accK((2*t) // 4, (2*t) % 4, b), accK((2*t+1) // 4, (2*t+1) % 4, b)))
    else:
        vh = int(kind[1]); acc = accV0 if vh == 0 else accV1
        for e in range(2):
            win = e * 16384 + 8192 + vh * 4096
            for cb in range(4):
                out.append((win, cb * 1024, acc(0, cb, 2*e), acc(0, cb, 2*e+1)))
    return out

def store_item(k, win, imm, Aa, tag):
    t = S_ST + 2 * (k % 2)
    _lab[0] += 1; n = _lab[0]
    if OPT.get('sc_kvst') is not None:
        last = I(f"global_store_dwordx4 v{V_ST}, {vr(Aa)}, {sr(t)} offset:{imm} {OPT['sc_kvst']}", tag=tag)
    else:
        last = (f"s_cmp_eq_u32 s{S_FAST}, 1", f"s_cbranch_scc1 L_kf{n}",
                I(f"global_store_dwordx4 v{V_ST}, {vr(Aa)}, {sr(t)} offset:{imm} {SC}", tag='SF'), f"s_branch L_kd{n}", f"L_kf{n}:",
                I(f"global_store_dwordx4 v{V_ST}, {vr(Aa)}, {sr(t)} offset:{imm}", tag=tag), f"L_kd{n}:")
    return [f"s_add_u32 s{t}, s{S_KV}, {win}", f"s_addc_u32 s{t+1}, s{S_KV+1}, 0", last]

def xn_loads(s):
    t = (A.S_DT, S_XA + 2, S_XA, 52)[s % 4]
    L = [tuple(I(x, tag=('own', s)) for x in (f"s_add_u32 s{t}, s{S_ROT}, {s}", f"s_and_b32 s{t}, s{t}, 15", f"s_lshl_b32 s{t}, s{t}, 10",
          f"s_add_u32 s{t}, s{S_XN}, s{t}", f"s_addc_u32 s{t+1}, s{S_XN+1}, 0"))]
    for b in range(4):
        L.append(I(f"global_load_dwordx4 {ar(xfrag(s, b))}, v{V_XOFF+b}, {sr(t)} {OPT.get('sc_xn', '')}", tag=('XN', s)))
    return L

def ffn_epilogue(ul):
    L = []; T = V_TMP4
    for b in range(4):
        G, U = accF(0, ul, b), accF(1, ul, b)
        stg = V_STG + ((ul * 4 + b) % 4) * 4
        L += [f"v_mul_f32 v{T+r}, {f32hex(-1.4426950408889634)}, v{G+r}" for r in range(4)]
        L += [f"v_exp_f32 v{T+r}, v{T+r}" for r in range(4)]
        L += [f"v_add_f32 v{T+r}, 1.0, v{T+r}" for r in range(4)]
        L += [f"v_rcp_f32 v{T+r}, v{T+r}" for r in range(4)]
        L += [f"v_mul_f32 v{G+r}, v{G+r}, v{U+r}" for r in range(4)]
        L += [f"v_mul_f32 v{G+r}, v{G+r}, v{T+r}" for r in range(4)]
        L += [f"v_cvt_pk_bf16_f32 v{stg}, v{G}, v{G+1}", f"v_cvt_pk_bf16_f32 v{stg+1}, v{G+2}, v{G+3}"]
        st = I(f"global_store_dwordx2 v{V_HOFF+b}, {vr(stg,2)}, {sr(S_HB)} offset:{ul*512} {SC}", tag='HST' if ul < 2 else 'HSTC')
        if ul == 2:
            _lab[0] += 1; lab = f"L_h2s{_lab[0]}"
            L.append((f"s_cmp_eq_u32 s{S_HAS3}, 1", f"s_cbranch_scc0 {lab}", st, f"{lab}:"))
        else: L.append(st)
    return L

def q_epilogue(half, accf):
    L = []; k = 0
    for b in range(4):
        for tt in range(2):
            t = 2 * half + tt
            Aa, Bb = accf(0, 2*tt, b), accf(0, 2*tt+1, b)
            stg = V_STG + (k % 4) * 4; k += 1
            L += [f"v_cvt_pk_bf16_f32 v{stg}, v{Aa}, v{Aa+1}", f"v_cvt_pk_bf16_f32 v{stg+1}, v{Aa+2}, v{Aa+3}",
                  f"v_cvt_pk_bf16_f32 v{stg+2}, v{Bb}, v{Bb+1}", f"v_cvt_pk_bf16_f32 v{stg+3}, v{Bb+2}, v{Bb+3}"]
            L += [f"v_accvgpr_write_b32 a{A.QF(b, t)+r}, v{stg+r}" for r in range(4)]
    return L

def kv_stage_groups(stage_off, lds_off, tag):
    G = []
    for j in range(4):
        off = lds_off + j * 16384
        m0 = f"s_add_u32 m0, s{A.S_KVM0}, {off}" if off >= 0 else f"s_sub_u32 m0, s{A.S_KVM0}, {-off}"
        for k in range(4):
            pre = [m0]
            if k == 0: pre = [f"s_add_u32 s{A.S_DT}, s{A.S_KVG}, {stage_off + j*16384}", f"s_addc_u32 s{A.S_DT+1}, s{A.S_KVG+1}, 0", m0]
            G.append((pre, I(f"global_load_lds_dwordx4 v{A.V_L16}, {sr(A.S_DT)} offset:{k*1024} {SC}", tag=tag)))
    return G

def t4_touch_setup():
    return [f"s_load_dwordx2 s[24:25], s[0:1], {KA['wo']}", f"s_load_dwordx2 s[26:27], s[0:1], {KA['w2']}",
            "s_lshr_b32 s40, s2, 3", f"s_lshr_b32 s41, s{S_H}, 3",
            "s_lshl_b32 s42, s41, 20", "s_lshl_b32 s43, s40, 15", "s_add_u32 s42, s42, s43", f"v_lshlrev_b32 v3, 7, v{V_LANE}", "v_add_u32 v3, s42, v3",
            f"s_mul_i32 s42, s41, {352*1024}", f"s_mul_i32 s43, s40, {88*128}", "s_add_u32 s42, s42, s43", f"v_lshlrev_b32 v7, 7, v{V_LANE}", "v_add_u32 v7, s42, v7",
            f"v_min_u32 v7, {1376*1024 - 64*128 - 128}, v7", "s_waitcnt lgkmcnt(0)"]
def t4_touches():
    L = [I(f"global_load_dword v59, v3, s[24:25]", tag='SF')]
    out = []
    for n in range(4):
        out.append([f"s_add_u32 s28, s24, {n*8192}", "s_addc_u32 s29, s25, 0", I("global_load_dword v95, v3, s[28:29]", tag='SF')])
    out.append([I("global_load_dword v95, v7, s[26:27]", tag='SF')])
    out.append(["s_add_u32 s28, s26, 8192", "s_addc_u32 s29, s27, 0", I("global_load_dword v95, v7, s[28:29]", tag='SF')])
    return out

def reduce_g(p, v, t, op):
    for sw in ("v_permlane16_swap_b32", "v_permlane32_swap_b32"):
        p.e(f"v_mov_b32 v{t}, v{v}\ns_nop 1\n{sw} v{v}, v{t}\ns_nop 1\n{op} v{v}, v{v}, v{t}")

def ctx_epilogue(ep, slots, tag):
    k = 0
    for b in slots:
        ep.e(f"s_lshl_b32 s40, s{S_QB+b}, 17\nv_add_u32 v{V_HOFF+b}, s40, v{A.V_L16}")
    for b in slots:
        for t in range(4):
            A0, B0 = A.O(2*t, b), A.O(2*t+1, b)
            for r in range(4):
                ep.e(f"v_mul_f32 v{A0+r}, v{A0+r}, v{A.V_L+b}\nv_mul_f32 v{B0+r}, v{B0+r}, v{A.V_L+b}")
            stg = V_STG + (k % 4) * 4; k += 1
            ep.e(f"v_cvt_pk_bf16_f32 v{stg}, v{A0}, v{A0+1}\nv_cvt_pk_bf16_f32 v{stg+1}, v{A0+2}, v{A0+3}")
            ep.e(f"v_cvt_pk_bf16_f32 v{stg+2}, v{B0}, v{B0+1}\nv_cvt_pk_bf16_f32 v{stg+3}, v{B0+2}, v{B0+3}")
            ep.ext([I(f"global_store_dwordx4 v{V_HOFF+b}, {vr(stg)}, {sr(S_CX)} offset:{t*1024} {SC}", tag=tag)])
```

```python
from common import *

RING = 0
XST  = 98304
V_LANE = 1
V_OFFW = 2
V_OFFF = 3
V_ST   = 4
V_XR0, V_XR1 = 5, 6
V_TR   = 8
V_WF   = 16
V_STG  = 32
V_OFFX = 48
ACC_HI = 128
ACC_MID = 64

def setup_tr_addr(p, vl, base, t0, t1, t2, rowmode):
    p.e(f"""
    v_lshrrev_b32 v{t0}, 4, v{vl}
    v_bfe_u32 v{t1}, v{vl}, 2, 2
    """)
    if rowmode == 'nat':
        p.e(f"""
        v_lshlrev_b32 v{t2}, 3, v{t0}
        v_add_u32 v{t2}, v{t2}, v{t1}
        v_and_b32 v{t0}, 1, v{t0}
        v_lshlrev_b32 v{t0}, 1, v{t0}
        v_lshrrev_b32 v{t1}, 1, v{t1}
        v_or_b32 v{t0}, v{t0}, v{t1}
        """)
    else:
        p.e(f"""
        v_lshlrev_b32 v{t2}, 2, v{t0}
        v_add_u32 v{t2}, v{t2}, v{t1}
        v_bfe_u32 v{t0}, v{t2}, 1, 2
        """)
    p.e(f"""
    v_lshlrev_b32 v{t2}, 7, v{t2}
    v_lshlrev_b32 v{t0}, 5, v{t0}
    v_add_u32 v{t2}, v{t2}, v{t0}
    v_and_b32 v{t1}, 3, v{vl}
    v_lshlrev_b32 v{t1}, 3, v{t1}
    v_add_u32 v{base}, v{t2}, v{t1}
    """)
    for cb in range(1, 4):
        p.e(f"v_xor_b32 v{base+cb}, {cb << 5}, v{base}")
    for cb in range(4):
        p.e(f"v_add_u32 v{base+4+cb}, 0x10000, v{base+cb}")

def setup_w_voff(p, dst, vl, s_w, stride, t0, t1, s_t, rowmode='nat', clamp_pieces=None):
    p.e(f"""
    v_lshrrev_b32 v{t0}, 3, v{vl}
    """)
    if rowmode == 'nat':
        p.e(f"""
        v_bfe_u32 v{t1}, v{t0}, 1, 1
        s_and_b32 s{s_t}, s{s_w}, 1
        s_lshl_b32 s{s_t}, s{s_t}, 1
        v_or_b32 v{t1}, s{s_t}, v{t1}
        """)
    else:
        p.e(f"v_bfe_u32 v{t1}, v{t0}, 1, 2")
    p.e(f"""
    v_lshlrev_b32 v{t1}, 1, v{t1}
    v_and_b32 v{dst}, 7, v{vl}
    v_xor_b32 v{dst}, v{dst}, v{t1}
    """)
    if clamp_pieces is not None:
        p.e(f"v_min_u32 v{dst}, s{clamp_pieces}, v{dst}")
    p.e(f"""
    v_lshlrev_b32 v{dst}, 4, v{dst}
    s_lshl_b32 s{s_t}, s{s_w}, 3
    v_add_u32 v{t0}, s{s_t}, v{t0}
    s_mov_b32 s{s_t}, {stride}
    v_mul_lo_u32 v{t0}, v{t0}, s{s_t}
    v_add_u32 v{dst}, v{dst}, v{t0}
    """)

class Chunk:
    def __init__(self, name, srcs, mode, acc, nblk=4, rot=None):
        self.name, self.srcs, self.mode, self.acc, self.nblk, self.rot = name, srcs, mode, acc, nblk, rot

def xfrag(s, b): return (s * 4 + b) * 4

class ProjStream:
    def __init__(self, chunks, s_w, s_tmp, s_rot=None, s_rt=None):
        self.chunks = chunks; self.s_w = s_w; self.s_tmp = s_tmp; self.s_rot = s_rot; self.s_rt = s_rt
        self.units = []
        for ci, c in enumerate(chunks):
            for s in range(16):
                for si in range(len(c.srcs)):
                    self.units.append((ci, s, si))
        assert len(self.units) % 8 == 0
        self.nstage = len(self.units) // 8
        self.st = Stream()
        self.frags = []
        self.chunk_gap = {}
        self.kstep_gap = {}
    slot_of = None
    issue_at = None
    def unit_lds(self, u):
        stg = u // 8
        slot = self.slot_of[stg] if self.slot_of else stg % 3
        return RING + slot * 32768 + (u % 8) * 4096
    def dma_unit(self, u, s_m0base):
        ci, s, si = self.units[u]
        base, coff, voff, ncb, kstride = self.chunks[ci].srcs[si]
        t = self.s_tmp + 2 * (u % 2)
        rot = self.chunks[ci].rot
        if rot is None:
            pre = [f"s_add_u32 s{t}, s{base}, {s * 32 * kstride + coff}",
                   f"s_addc_u32 s{t+1}, s{base+1}, 0",
                   f"s_add_u32 m0, s{s_m0base}, {self.unit_lds(u)}"]
        else:
            r = self.s_rt + (u % 2)
            pre = [f"s_add_u32 s{r}, s{rot}, {s}", f"s_and_b32 s{r}, s{r}, 15", f"s_mul_i32 s{r}, s{r}, {32 * kstride}"]
            if coff: pre.append(f"s_or_b32 s{r}, s{r}, {coff}") if (32 * kstride) % 256 == 0 else pre.append(f"s_add_u32 s{r}, s{r}, {coff}")
            pre += [f"s_add_u32 s{t}, s{base}, s{r}", f"s_addc_u32 s{t+1}, s{base+1}, 0",
                    f"s_add_u32 m0, s{s_m0base}, {self.unit_lds(u)}"]
        return pre, I(f"global_load_lds_dwordx4 v{voff}, {sr(t)}", tag=('W', u // 8))
    def tr_reads(self, fi):
        u, cb = self.frags[fi][0], self.frags[fi][1]
        off = self.unit_lds(u)
        a = V_TR + cb
        if off >= 65536 - 512: a += 4; off -= 65536
        assert off >= 0
        d = V_WF + (fi % 4) * 4
        return [I(f"ds_read_b64_tr_b16 {vr(d,2)}, v{a} offset:{off}", tag=('F', fi)),
                I(f"ds_read_b64_tr_b16 {vr(d+2,2)}, v{a} offset:{off+512}", tag=('F', fi))]
    def build(self, s_m0base):
        st = self.st
        for u, (ci, s, si) in enumerate(self.units):
            c = self.chunks[ci]
            ncb = c.srcs[si][3]
            for cb in range(ncb):
                fi = len(self.frags)
                wf = vr(V_WF + (fi % 4) * 4)
                g0 = None
                for b in range(c.nblk):
                    acc = vr(c.acc(si, cb, b))
                    cin = acc if s > 0 else "0"
                    xf = ar(xfrag(s, b))
                    if c.mode == 'T': g = st.mfma(f"{MF} {acc}, {wf}, {xf}, {cin}")
                    else: g = st.mfma(f"{MF} {acc}, {xf}, {wf}, {cin}")
                    if g0 is None: g0 = g
                self.frags.append((u, cb, g0))
                self.kstep_gap.setdefault((ci, s), g0)
                lo, hi = self.chunk_gap.get(ci, (g0, g0))
                self.chunk_gap[ci] = (lo, g0 + c.nblk - 1)
        nf = len(self.frags)
        first_frag_of_stage = {}
        for fi, (u, cb, g0) in enumerate(self.frags):
            first_frag_of_stage.setdefault(u // 8, fi)
        self.first_frag_of_stage = first_frag_of_stage
        for fi in range(1, nf):
            g = self.frags[fi][2] - 1
            st.at(g, W(lg=[('F', fi)]))
        for fi in range(nf):
            tgt = fi + 3
            if tgt >= nf: continue
            g0 = self.frags[fi][2]
            stg = self.frags[tgt][0] // 8
            if first_frag_of_stage[stg] == tgt:
                st.at(g0, W(vm=[('W', stg)]))
                st.at(g0, "s_barrier")
                r = self.tr_reads(tgt)
                st.at(g0 + 1, r[0]); st.at(g0 + 2, r[1])
                todo = self.issue_at.get(stg, []) if self.issue_at else ([stg + 1] if stg + 1 < self.nstage else [])
                n = 0
                for nxt in todo:
                    for k in range(8):
                        pre, d = self.dma_unit(nxt * 8 + k, s_m0base)
                        st.dma(g0 + 3 + 4 * n, pre, d); n += 1
            else:
                r = self.tr_reads(tgt)
                st.at(g0, r[0]); st.at(g0 + 1, r[1])
        return st
    def prologue_reads(self):
        out = []
        for fi in range(3): out += self.tr_reads(fi)
        return out
```

```python
from asmlib import I, W

SCALARISH = ('salu', 'wait', 'nop', 'barrier', 'branch', 'misc')
def cost(i):
    return 2 if i.kind == 'trans' else 1

def mk(x): return x if isinstance(x, I) else I(x)

class Stream:
    def __init__(self, cap=2):
        self.spine = []; self.gaps = []; self.cap = cap
        self.queues = {}
        self.dmas = []
        self.seqs = []
        self.seq_first = False
    def mfma(self, text):
        self.spine.append(I(text)); self.gaps.append([]); return len(self.spine) - 1
    def at(self, gap, ins):
        if not isinstance(ins, (list, tuple)): ins = [ins]
        for x in ins: self.gaps[gap].append(mk(x))
    def floating(self, q, earliest, ins, latest=None):
        if not isinstance(ins, list): ins = [ins]
        k = 0
        while k < len(ins):
            x = ins[k]
            if isinstance(x, tuple): grp = [mk(y) for y in x]
            else:
                grp = [mk(x)]
                if grp[0].op == 's_add_u32' and k + 1 < len(ins) and not isinstance(ins[k+1], tuple) and mk(ins[k+1]).op == 's_addc_u32':
                    grp.append(mk(ins[k+1])); k += 1
            self.queues.setdefault(q, []).append((earliest, latest, grp))
            k += 1
    def seq(self, start, ins, step=1, latest=None):
        self.seqs.append((start, step, latest, [tuple(mk(y) for y in x) if isinstance(x, tuple) else mk(x) for x in ins]))
    def dma(self, earliest, scalars, ins):
        self.dmas.append((earliest, [tuple(mk(y) for y in x) if isinstance(x, tuple) else mk(x) for x in scalars], mk(ins)))
    def used(self, lst):
        u = 0
        for k, x in enumerate(lst):
            if k == 0 and x.kind in SCALARISH: continue
            if x.kind == 'label': continue
            u += cost(x)
        return u
    def layout(self, dma_spacing=1):
        n = len(self.spine); gaps = self.gaps
        def do_dma():
            last = -1
            for (e, sc, d) in sorted(self.dmas, key=lambda t: t[0]):
                g = max(e, last)
                k = 0
                while k < len(sc):
                    if isinstance(sc[k], tuple):
                        grp = list(sc[k]); k += 1
                        gaps[g] += grp
                        continue
                    grp = [sc[k]]
                    if sc[k].op == 's_add_u32' and k + 1 < len(sc) and not isinstance(sc[k+1], tuple) and sc[k+1].op == 's_addc_u32':
                        grp.append(sc[k+1]); k += 1
                    k += 1
                    while g < n - 1 and self.used(gaps[g] + grp) > self.cap: g += 1
                    gaps[g] += grp
                g += 1
                while g < n - 1 and (self.used(gaps[g] + [d]) > self.cap or any(y.kind == 'barrier' for y in gaps[g])): g += 1
                assert g < n, "dma ran off the stream"
                k = 0
                while k < len(gaps[g]) and gaps[g][k].kind in ('wait',): k += 1
                gaps[g].insert(k, d)
                last = g + dma_spacing - 1
        def do_seq():
            for (start, step, latest, items) in self.seqs:
                g = start - 1
                k = 0
                while k < len(items):
                    x = items[k]
                    grp = list(x) if isinstance(x, tuple) else [x]
                    if not isinstance(x, tuple) and x.op == 's_add_u32' and k + 1 < len(items) and not isinstance(items[k+1], tuple) and items[k+1].op == 's_addc_u32':
                        grp.append(items[k+1]); k += 1
                    g = max(g + (1 if step else 0), start + k * step, start)
                    if not isinstance(x, tuple):
                        while g < n - 1 and self.used(gaps[g] + grp) > self.cap: g += 1
                    if latest is not None and g > latest: raise RuntimeError(f"seq missed deadline {grp[0].text}: {g} > {latest}")
                    gaps[min(g, n - 1)] += grp
                    k += 1
        if self.seq_first: do_seq(); do_dma()
        else: do_dma(); do_seq()
        for q, L in self.queues.items():
            g = 0
            for (e, l, grp) in L:
                g = max(g, e)
                cap = self.cap if len(grp) == 1 else max(self.cap, sum(cost(y) for y in grp if y.kind != 'label'))
                while g < n and self.used(gaps[g] + grp) > cap: g += 1
                if g >= n: g = n - 1
                if l is not None and g > l:
                    raise RuntimeError(f"queue {q}: missed deadline {grp[0].text}: {g} > {l}")
                gaps[g] += grp
        out = []
        for m, L in zip(self.spine, gaps):
            out.append(m); out += L
        return out
```

```python
from fused import *
from fused import _lab, OPT

T_TQ, T_CB, T_KS, T_SEL = 4, 5, 6, 7
T_WO, T_W2 = 8, 10
T_AH, T_AC = 14, 16
T_OUT, T_XR = 18, 24
T_PW, T_PR = 26, 28
T_T = 30
T_M0A, T_M0W = 36, 37
V_AR16, V_AR8 = 5, 6
V_OFFO = 2
V_L16 = 4
V_TRA = 8
V_WF = 16
V_AF = 64
V_RES = 32
V_OOFF = 40
ACC = 128
NSLOT = 4
def acc(nb, b): return ACC + (nb * 4 + b) * 4

def stage_list():
    steps = [('h', i) for i in range(11)]
    S = [steps[0:2], steps[2:4], steps[4:6], steps[6:8], steps[8:10], steps[10:11]]
    S += [[('c', 2*k), ('c', 2*k+1)] for k in range(16)]
    return S

def emit(m, sp, spins, opts):
    p = Prog()
    vl = V_LANE
    p.e(f"""
    s_load_dwordx2 {sr(T_WO)}, s[0:1], {KA['wo']}
    s_load_dwordx2 {sr(T_W2)}, s[0:1], {KA['w2']}
    s_load_dwordx2 {sr(T_OUT)}, s[0:1], {KA['out']}
    s_mov_b64 {sr(T_XR)}, {sr(S_X)}
    s_lshr_b32 s{T_KS}, s{S_H}, 3
    s_lshr_b32 s{T_SEL}, s{S_H}, 2
    s_and_b32 s{T_SEL}, s{T_SEL}, 1
    s_and_b32 s{T_CB}, s{S_H}, 3
    s_sub_u32 s40, 15, s{S_J}
    s_cmp_eq_u32 s{T_SEL}, 0
    s_cselect_b32 s{T_TQ}, s{S_J}, s40
    """)
    p.e(f"""
    s_lshr_b32 s40, s{S_W}, 1
    s_lshl_b32 s40, s40, 13
    v_lshlrev_b32 v{V_AR16}, 4, v{vl}
    v_add_u32 v{V_AR16}, s40, v{V_AR16}
    v_lshlrev_b32 v{V_AR8}, 3, v{vl}
    v_add_u32 v{V_AR8}, s40, v{V_AR8}
    """)
    setup_tr_addr(p, vl, V_TRA, 60, 61, 62, 'perm')
    p.e(f"s_and_b32 s40, s{S_W}, 1\ns_lshl_b32 s40, s40, 12\ns_add_u32 s40, s40, 16384")
    for k in range(8): p.e(f"v_add_u32 v{V_TRA+k}, s40, v{V_TRA+k}")
    setup_w_voff(p, V_OFFO, vl, S_W, 1024, 60, 61, 40, rowmode='perm')
    p.e(f"""
    s_lshl_b32 s{T_M0W}, s{S_W}, 10
    s_add_u32 s{T_M0W}, s{T_M0W}, 16384
    s_lshl_b32 s{T_M0A}, s{S_W}, 12
    s_waitcnt lgkmcnt(0)
    """)
    p.e(f"s_lshl_b32 s40, s{T_CB}, 8\ns_mul_i32 s41, s{T_KS}, {11*32*1024}\ns_add_u32 s41, s41, s40")
    add64s(p, T_W2, T_W2, 41)
    p.e(f"s_lshl_b32 s41, s{T_KS}, 20\ns_add_u32 s41, s41, s40")
    add64s(p, T_WO, T_WO, 41)
    p.e(f"""
    s_lshl_b32 s42, s{T_TQ}, 3
    s_lshl_b32 s43, s{S_W}, 1
    s_add_u32 s42, s42, s43
    s_mul_i32 s40, s42, {86*512}
    s_mul_i32 s41, s{T_KS}, {11*1024}
    s_add_u32 s40, s40, s41
    s_add_u32 s40, s40, {WS_H}
    """)
    add64s(p, T_AH, S_WS, 40)
    p.e(f"""
    s_lshl_b32 s40, s42, 17
    s_lshl_b32 s41, s{T_KS}, 15
    s_add_u32 s40, s40, s41
    s_add_u32 s40, s40, {WS_CTX}
    """)
    add64s(p, T_AC, S_WS, 40)
    p.e(f"""
    s_lshr_b32 s40, s{S_W}, 1
    s_lshl_b32 s40, s40, 2
    s_add_u32 s40, s40, s{T_KS}
    s_lshl_b32 s41, s{T_TQ}, 3
    s_add_u32 s40, s40, s41
    s_lshl_b32 s40, s40, 4
    v_and_b32 v60, 15, v{vl}
    v_add_u32 v60, s40, v60
    v_lshlrev_b32 v60, 10, v60
    v_lshrrev_b32 v61, 4, v{vl}
    v_lshlrev_b32 v61, 3, v61
    s_lshl_b32 s41, s{T_CB}, 8
    s_and_b32 s42, s{S_W}, 1
    s_lshl_b32 s42, s42, 7
    s_add_u32 s41, s41, s42
    v_add_u32 v61, s41, v61
    v_add_u32 v{V_OOFF}, v60, v61
    """)
    for nb in range(4):
        p.ext([I(f"global_load_dwordx2 {vr(V_RES+2*nb,2)}, v{V_OOFF}, {sr(T_XR)} offset:{nb*32}", tag='RES')])
    p.e(f"""
    s_lshl_b32 s40, s{S_J}, 3
    s_and_b32 s41, s{S_H}, 7
    s_add_u32 s40, s40, s41
    s_lshl_b32 s40, s40, 18
    s_lshl_b32 s41, s{S_W}, 12
    s_add_u32 s40, s40, s41
    s_add_u32 s40, s40, {WS_PART}
    s_lshl_b32 s41, s{T_KS}, 14
    s_add_u32 s41, s41, s40
    s_lshl_b32 s42, s{T_KS}, 16
    s_add_u32 s42, s42, s40
    """)
    add64s(p, T_PW, S_WS, 41)
    add64s(p, T_PR, S_WS, 42)
    S = stage_list()
    flat = [(si, e, st_) for si, stg in enumerate(S) for e, st_ in enumerate(stg)]
    def slot_base(si): return (si % NSLOT) * 32768
    T_IX = 38
    def dma_groups(si):
        G = []
        kind = S[si][0][0]; i0 = S[si][0][1]; ne = len(S[si])
        pairs = [30, 32, 34, 44]
        def m0(base, off): return f"s_add_u32 m0, s{base}, {off}" if off >= 0 else f"s_sub_u32 m0, s{base}, {-off}"
        first = []
        if kind == 'c':
            first = [(f"s_lshl_b32 s{T_IX}, s{T_CB}, 3", f"s_add_u32 s{T_IX}, s{T_IX}, {i0}", f"s_and_b32 s{T_IX}, s{T_IX}, {31 if opts.get('t4rot', 1) else 0xffff}",
                      f"s_lshl_b32 s{T_IX+1}, s{T_IX}, 15", f"s_lshl_b32 s{T_IX}, s{T_IX}, 10")]
            if not opts.get('t4rot', 1):
                first = [(f"s_mov_b32 s{T_IX}, {i0*1024}", f"s_mov_b32 s{T_IX+1}, {i0*32768}")]
        for e in range(ne):
            t = pairs[e]
            i = i0 + e
            if kind == 'c':
                pre = [(f"s_add_u32 s{t}, s{T_WO}, s{T_IX+1}", f"s_addc_u32 s{t+1}, s{T_WO+1}, 0")]
                if e: pre = [(f"s_add_u32 s42, s{T_IX+1}, 32768", f"s_add_u32 s{t}, s{T_WO}, s42", f"s_addc_u32 s{t+1}, s{T_WO+1}, 0")]
            elif i == 10:
                pre = [(f"s_cmp_eq_u32 s{T_KS}, 3", f"s_cselect_b32 s42, {32*1024}, 0", f"s_sub_u32 s42, {i*32768}, s42",
                        f"s_add_u32 s{t}, s{T_W2}, s42", f"s_addc_u32 s{t+1}, s{T_W2+1}, 0")]
            else:
                pre = [(f"s_add_u32 s{t}, s{T_W2}, {i*32768}", f"s_addc_u32 s{t+1}, s{T_W2+1}, 0")]
            for ch in range(2):
                pp = (first + pre if ch == 0 else []) + [m0(T_M0W, slot_base(si) + e*8192 + ch*4096 - ch*128)]
                first = []
                G.append((pp, I(f"global_load_lds_dwordx4 v{V_OFFO}, {sr(t)} offset:{ch*128}", tag=('T', si))))
        for q in range(2):
            t = pairs[2 + q]
            if kind == 'c':
                pre = [(f"s_add_u32 s42, s{T_IX}, {q*131072}", f"s_add_u32 s{t}, s{T_AC}, s42", f"s_addc_u32 s{t+1}, s{T_AC+1}, 0")]
            elif i0 == 10:
                pre = [(f"s_cmp_eq_u32 s{T_KS}, 3", "s_cselect_b32 s42, 1024, 0", f"s_sub_u32 s42, {q*86*512 + i0*1024}, s42",
                        f"s_add_u32 s{t}, s{T_AH}, s42", f"s_addc_u32 s{t+1}, s{T_AH+1}, 0")]
            else:
                pre = [(f"s_add_u32 s{t}, s{T_AH}, {q*86*512 + i0*1024}", f"s_addc_u32 s{t+1}, s{T_AH+1}, 0")]
            for e in range(ne):
                pp = (pre if e == 0 else []) + [m0(T_M0A, slot_base(si) + q*2048)]
                G.append((pp, I(f"global_load_lds_dwordx4 v{V_L16}, {sr(t)} offset:{e*1024} {opts.get('sc_t4a', '')}", tag=('T', si))))
        return G
    st = Stream(cap=3)
    st.seq_first = True
    fr = []
    kgap = {}
    for n, (si, e, (kind, i)) in enumerate(flat):
        ab = (n & 1) * 4
        for nb in range(4):
            fi = len(fr); g0 = None
            for b in range(4):
                a = vr(acc(nb, b))
                g = st.mfma(f"{MF} {a}, {vr(V_WF + (fi % 4) * 4)}, {vr(V_AF + (ab + b) * 4)}, {'0' if n == 0 else a}")
                if g0 is None: g0 = g
            fr.append((si, e, nb, g0, n))
            kgap.setdefault(n, g0)
    def tr_reads(fi):
        si, e, nb, g0, n = fr[fi]
        off = slot_base(si) + e * 8192
        a = V_TRA + nb
        if off >= 65536 - 16384 - 4096 - 2048: a += 4; off -= 65536
        if off < 0:
            a -= 4; off += 65536
        d = V_WF + (fi % 4) * 4
        return [I(f"ds_read_b64_tr_b16 {vr(d,2)}, v{a} offset:{off}", tag=('F', fi)), I(f"ds_read_b64_tr_b16 {vr(d+2,2)}, v{a} offset:{off+2048}", tag=('F', fi))]
    def a_reads(n):
        si, e, (kind, i) = flat[n]
        L = []
        for b in range(4):
            d = V_AF + ((n & 1) * 4 + b) * 4
            off = slot_base(si) + b * 2048 + e * 1024
            if kind == 'h':
                base = V_AR8
                if off + 512 > 65535: base = V_AR8 + 50; off -= 65536
                L += [I(f"ds_read_b64 {vr(d,2)}, v{base} offset:{off}", tag=('A', n)), I(f"ds_read_b64 {vr(d+2,2)}, v{base} offset:{off+512}", tag=('A', n))]
            else:
                base = V_AR16
                if off > 65535 - 16: base = V_AR16 + 52; off -= 65536
                L.append(I(f"ds_read_b128 {vr(d)}, v{base} offset:{off}", tag=('A', n)))
        return L
    p.e(f"v_add_u32 v56, 0x10000, v{V_AR8}\nv_add_u32 v57, 0x10000, v{V_AR16}")
    nf = len(fr)
    first_frag = {}
    for fi, f in enumerate(fr): first_frag.setdefault(f[0], fi)
    for fi in range(1, nf): st.at(fr[fi][3] - 1, W(lg=[('F', fi)]))
    bar_gap = {}
    for fi in range(nf):
        tgt = fi + 3
        if tgt >= nf: continue
        g0 = fr[fi][3]; si = fr[tgt][0]
        r = tr_reads(tgt)
        if first_frag[si] == tgt:
            st.at(g0, W(vm=[('T', si)])); st.at(g0, "s_barrier"); bar_gap[si] = g0
            st.at(g0 + 1, r[0]); st.at(g0 + 2, r[1])
        else:
            st.at(g0, r[0]); st.at(g0 + 1, r[1])
    for n in range(1, len(flat)):
        si = flat[n][0]
        e = max(kgap[n - 1] + 1, bar_gap[si] + 1) if flat[n][1] == 0 else kgap[n - 1] + 1
        st.seq(e, a_reads(n), step=1, latest=kgap[n] - 3)
        st.at(kgap[n] - 1, W(lg=[('A', n)]))
        if flat[n][2] == ('h', 10):
            _lab[0] += 1; lab = f"L_t4z{_lab[0]}"
            z = [f"v_mov_b32 v{V_AF + (n & 1) * 16 + r}, 0" for r in range(16)]
            st.at(kgap[n] - 1, [f"s_cmp_eq_u32 s{T_KS}, 3", f"s_cbranch_scc0 {lab}"] + z + [f"{lab}:", "s_nop 1"])
    CT0 = 6
    chk_at = opts.get('t4chk', 4)
    for si in range(1, len(S)):
        if si not in bar_gap: continue
        nxt = si + 2
        if nxt >= len(S): continue
        if nxt >= CT0 and si < chk_at: continue
        todo = [nxt]
        if si == chk_at: todo = [k for k in range(CT0, nxt + 1)] if nxt >= CT0 else [nxt]
        n = 0
        for stg in todo:
            for pre, d in dma_groups(stg):
                st.dma(bar_gap[si] + 3 + 2 * n + (6 if si == chk_at else 0), pre, d); n += 1
    cx_setup = [f"v_and_b32 v{V_FLG}, 7, v{vl}", f"v_lshlrev_b32 v{V_FLG}, 2, v{V_FLG}", f"s_lshl_b32 s40, s{S_J}, 3", f"s_lshl_b32 s41, s{T_SEL}, 2",
                "s_add_u32 s40, s40, s41", f"s_add_u32 s40, s40, s{T_KS}", "s_lshl_b32 s40, s40, 7", f"s_add_u32 s40, s40, {FL_CX}", f"v_add_u32 v{V_FLG}, s40, v{V_FLG}"]
    st.seq(bar_gap[chk_at] - 20, [poll_issue(cx_setup)])
    st.seq(bar_gap[chk_at] + 3, [poll_check(spins)])
    body = st.layout()
    p.ext(poll_issue([f"v_and_b32 v{V_FLG}, 31, v{vl}", f"v_lshlrev_b32 v{V_FLG}, 2, v{V_FLG}", f"s_lshl_b32 s40, s{S_J}, 7", f"s_add_u32 s40, s40, {FL_H}",
                      f"v_add_u32 v{V_FLG}, s40, v{V_FLG}"]))
    p.ext(poll_check(spins))
    def emit_dma(pre, d):
        for x in pre: p.ext(list(x) if isinstance(x, tuple) else [x])
        p.e("s_nop 0"); p.ext([d])
    for si in range(3):
        for pre, d in dma_groups(si): emit_dma(pre, d)
    if sp: p.e(sp.instr())
    p.ext([W(vm=[('T', 0)])])
    p.e("s_barrier")
    p.ext(a_reads(0))
    for fi in range(3): p.ext(tr_reads(fi))
    p.ext([W(lg=[('A', 0), ('F', 0)])])
    p.ext(body)
    if sp: p.e(sp.instr())
    p.e("s_nop 7")
    for d in range(1, 4):
        for b in range(4):
            _lab[0] += 1; lab = f"L_px{_lab[0]}"
            p.e(f"s_add_u32 s40, s{T_KS}, {d}\ns_and_b32 s40, s40, 3\ns_cmp_eq_u32 s40, {b}\ns_cbranch_scc0 {lab}")
            p.e(f"s_add_u32 s{T_T}, s{T_PW}, {b*65536}\ns_addc_u32 s{T_T+1}, s{T_PW+1}, 0")
            for nb in range(4):
                p.ext([I(f"global_store_dwordx4 v{V_L16}, {vr(acc(nb, b))}, {sr(T_T)} offset:{nb*1024} {SC}", tag='SF')])
            p.e(f"{lab}:")
    for b in range(4):
        _lab[0] += 1; lab = f"L_po{_lab[0]}"
        p.e(f"s_cmp_eq_u32 s{T_KS}, {b}\ns_cbranch_scc0 {lab}")
        for nb in range(4):
            for r in range(4): p.e(f"v_mov_b32 v{64 + nb*4 + r}, v{acc(nb, b) + r}")
        p.e(f"{lab}:")
    p.e("s_waitcnt vmcnt(0)\ns_barrier")
    p.ext(set_flag_group('pt'))
    if sp: p.e(sp.instr())
    p.ext(poll_issue([f"v_and_b32 v{V_FLG}, 3, v{vl}", f"v_lshlrev_b32 v{V_FLG}, 2, v{V_FLG}", f"s_lshl_b32 s40, s{S_J}, 3", f"s_and_b32 s41, s{S_H}, 7",
                      "s_add_u32 s40, s40, s41", "s_lshl_b32 s40, s40, 7", f"s_add_u32 s40, s40, {FL_PT}", f"v_add_u32 v{V_FLG}, s40, v{V_FLG}"]))
    p.ext(poll_check(spins))
    for d in range(1, 4):
        p.e(f"s_add_u32 s40, s{T_KS}, {d}\ns_and_b32 s40, s40, 3\ns_lshl_b32 s40, s40, 14\ns_add_u32 s{T_T}, s{T_PR}, s40\ns_addc_u32 s{T_T+1}, s{T_PR+1}, 0")
        for nb in range(4):
            p.ext([I(f"global_load_dwordx4 {vr(80 + (d-1)*16 + nb*4)}, v{V_L16}, {sr(T_T)} offset:{nb*1024} {SC}", tag='PR')])
    p.e("s_waitcnt vmcnt(0)")
    for nb in range(4):
        a = 64 + nb * 4
        for r in range(4):
            for d in range(3): p.e(f"v_add_f32 v{a+r}, v{a+r}, v{80 + d*16 + nb*4 + r}")
        x0, x1 = V_RES + 2*nb, V_RES + 2*nb + 1
        p.e(f"""
        v_lshlrev_b32 v56, 16, v{x0}
        v_and_b32 v57, 0xffff0000, v{x0}
        v_lshlrev_b32 v58, 16, v{x1}
        v_and_b32 v59, 0xffff0000, v{x1}
        v_add_f32 v{a}, v{a}, v56
        v_add_f32 v{a+1}, v{a+1}, v57
        v_add_f32 v{a+2}, v{a+2}, v58
        v_add_f32 v{a+3}, v{a+3}, v59
        v_cvt_pk_bf16_f32 v{x0}, v{a}, v{a+1}
        v_cvt_pk_bf16_f32 v{x1}, v{a+2}, v{a+3}
        global_store_dwordx2 v{V_OOFF}, {vr(x0,2)}, {sr(T_OUT)} offset:{nb*32}
        """)
    auto_waits(p.ins)
    pr = check_hazards(p.ins, 't4') + check_waits(p.ins, 't4') + check_scc(p.ins, 't4') + check_m0(p.ins, 't4')
    if pr and not sp: print("\n".join(pr[:20])); raise SystemExit(f"{len(pr)} problems in t4")
    m.ext([I(i.text) if i.kind == 'wait' else i for i in p.ins])
```

```python
from fused import *
from fused import _lab, OPT

class St(Stamps):
    def instr(self):
        k = self.n; self.n += 1
        return f"{'s_memtime' if Stamps.cyc else 's_memrealtime'} s[{STAMP0+2*k}:{STAMP0+2*k+1}]"
    def dump(self, p, kidx):
        p.e(f"""
        s_waitcnt lgkmcnt(0)
        v_lshrrev_b32 v2, 6, v0
        s_lshl_b32 s40, s2, 2
        v_add_u32 v2, s40, v2
        v_lshlrev_b32 v2, 6, v2
        v_add_u32 v2, {WS_STAMP + kidx*65536}, v2
        """)
        for k in range(self.n):
            p.e(f"v_mov_b32 v3, s{STAMP0+2*k}")
            p.e(f"global_store_dword v2, v3, {sr(S_WS)} offset:{4*k}")
        p.e("s_waitcnt vmcnt(0)")

def gen_fused(name, stamp=False, with_t4=False, opts=None):
    opts = opts or {}
    OPT.clear(); OPT.update(opts)
    p = Prog(); sp = St(); spins = []
    _lab[0] = 0
    p.e("s_cmp_ge_u32 s2, 256\ns_cbranch_scc1 L_end")
    if stamp: p.e(sp.instr())
    pro = opts.get('stamp_pro') and stamp
    setup(p)
    if opts.get('pfc', 0): prefetch_code(p, opts['pfc'])
    if pro: p.e(sp.instr())
    chunks = [Chunk('K', [(S_WUK, 0, proj.V_OFFW, 4, 8192), (S_WUK, 128, proj.V_OFFW, 4, 8192)], 'T', accK, rot=(S_ROT1 if opts.get('rot1', 0) else None)),
              Chunk('V0', [(S_WUV, 0, proj.V_OFFW, 4, 8192)], 'N', accV0, rot=(S_ROT1 if opts.get('rot1', 0) else None)),
              Chunk('V1', [(S_WUV, 128, proj.V_OFFW, 4, 8192)], 'N', accV1, rot=(S_ROT1 if opts.get('rot1', 0) else None)),
              Chunk('F', [(S_W1, 0, proj.V_OFFF, 3, 2752), (S_W3, 0, proj.V_OFFF, 3, 2752)], 'T', accF, rot=S_ROT),
              Chunk('Q0', [(S_WQ, 0, proj.V_OFFW, 4, 8192)], 'T', accQ0, rot=S_ROT),
              Chunk('Q1', [(S_WQ, 128, proj.V_OFFW, 4, 8192)], 'T', accQ1, rot=S_ROT)]
    ps = ProjStream(chunks, S_W, S_TMP, s_rot=S_ROT, s_rt=S_RT)
    if opts.get('deep', 1):
        ps.slot_of = {0: 0, 1: 1, 2: 2, 3: 0, 4: 1, 5: 2, 6: 3, 7: 0, 8: 1, 9: 2, 10: 3, 11: 0, 12: 1, 13: 2, 14: 0, 15: 1}
        ps.issue_at = {1: [2], 2: [3], 3: [4], 4: [5, 6], 5: [7], 6: [8], 7: [9], 8: [10], 9: [11], 10: [12], 11: [13], 12: [], 13: [14], 14: [15], 15: []}
        held = {}
        for bk in range(1, 16):
            for stg in ps.issue_at[bk]:
                prev = [m for m in range(stg) if ps.slot_of[m] == ps.slot_of[stg]]
                assert not prev or max(prev) <= bk - 2, (stg, bk)
                assert stg >= bk, (stg, bk)
    st = ps.build(S_M0W)
    def emit_dma(pre, d):
        p.ext(pre); p.e("s_nop 0"); p.ext([d])
    X0 = lambda: [emit_dma(*x_dma(0, i)) for i in range(8)]
    W0 = lambda: [emit_dma(*ps.dma_unit(k, S_M0W)) for k in range(8)]
    X1 = lambda: [emit_dma(*x_dma(1, i)) for i in range(8)]
    W1 = lambda: [emit_dma(*ps.dma_unit(8 + k, S_M0W)) for k in range(8)]
    early = [tuple(j) for j in opts.get('pf_early', [('c', 1)])]
    late = [tuple(j) for j in opts.get('pf_late', [])]
    instream = [(tuple(j[0]), j[1], j[2]) for j in opts.get('pf_stream', [[('k', 0), 0, 4], [('k', 1), 0, 20], [('c', 2), 1, 4], [('c', 3), 2, 26], [('c', 4), 4, 26], [('c', 5), 6, 26],
                                                                        [('c', 6), 8, 26], [('c', 7), 9, 26], [('v', 0), 10, 26], [('v', 1), 12, 10]])]
    prefetch_t1_setup(p)
    if opts.get('x0early', 1): X0(); W0()
    prefetch_t1(p, early, w0=3)
    if pro: p.e(sp.instr())
    setup2(p); nonce_publish(p)
    if pro: p.e(sp.instr())
    p.ext([W(vm=['LNX'])])
    if pro: p.e(sp.instr())
    ln_compute(p, 65536)
    p.ext(nonce_issue())
    if pro: p.e(sp.instr())
    if not opts.get('x0early', 1): X0(); W0()
    prefetch_t1(p, late, w0=1)
    X1(); W1()
    vl = V_LANE
    setup_tr_addr(p, vl, proj.V_TR, 60, 61, 62, 'nat')
    setup_w_voff(p, proj.V_OFFF, vl, S_W, 2752, 60, 61, 40, clamp_pieces=S_NU)
    p.e(f"""
    v_and_b32 v60, 15, v{vl}
    v_lshrrev_b32 v61, 4, v{vl}
    v_lshrrev_b32 v62, 1, v60
    v_xor_b32 v61, v61, v62
    v_lshlrev_b32 v61, 4, v61
    v_lshlrev_b32 v60, 7, v60
    v_add_u32 v60, v60, v61
    v_add_u32 v{proj.V_XR0}, s{S_XB}, v60
    v_xor_b32 v{proj.V_XR1}, 64, v{proj.V_XR0}
    """)
    if pro: p.e(sp.instr())
    p.ext([W(vm=[('X', 0)])])
    if pro: p.e(sp.instr())
    p.ext(x_reads(0))
    p.ext([W(vm=[('W', 0)])])
    if pro: p.e(sp.instr())
    p.e("s_barrier")
    p.ext(ps.prologue_reads())
    p.ext([W(lg=[('F', 0), ('XR', 0)])])
    if stamp: p.e(sp.instr())
    KG = ps.kstep_gap; CG = ps.chunk_gap
    def barrier_gap(stage):
        tgt = ps.first_frag_of_stage[stage]
        return ps.frags[tgt - 3][2]
    for kp in range(8):
        G = KG[(0, 2*kp)]; G2 = KG[(0, 2*kp+1)]
        if kp + 2 < 8:
            for i in range(8):
                pre, d = x_dma(kp + 2, i)
                st.dma(G + 1 + 3 * i, pre, d)
        if kp + 1 < 8:
            st.at(G2, W(vm=[('X', kp + 1)]))
            st.floating('xr', G2 + 1, x_reads(kp + 1))
            st.at(KG[(0, 2*kp+2)] - 1, W(lg=[('XR', kp + 1)]))
    for n, (j, ks, go) in enumerate(instream):
        _lab[0] += 1; lab = f"L_pv{_lab[0]}"
        st.seq(KG[(0, ks)] + go, [(f"s_cmp_eq_u32 s{S_W}, {n % 4}", f"s_cbranch_scc0 {lab}", touch(*j), f"{lab}:")])
    g = barrier_gap(1)
    st.gaps[g].insert(0, I('s_nop 0'))
    for x in reversed(nonce_check(spins)): st.gaps[g].insert(0, x if isinstance(x, I) else I(x))
    st.seq(g + 1, [set_flag_group('xi')])
    g = barrier_gap(2)
    st.gaps[g].insert(0, W(vm=['XNST']))
    st.seq(g + 1, [set_flag_group('xn')])
    v0s, v0e = CG[1]; v1s, v1e = CG[2]; fs, fe = CG[3]; q0s, q0e = CG[4]; q1s, q1e = CG[5]
    Kit = kv_items('K'); V0it = kv_items('V0'); V1it = kv_items('V1')
    st.seq(v0s - opts.get('arr_lead', 150), [poll_issue([f"v_and_b32 v{V_FLG}, 7, v{vl}", f"v_lshlrev_b32 v{V_FLG}, 2, v{V_FLG}", f"s_lshl_b32 s40, s{S_H}, 7",
                                                        f"s_add_u32 s40, s40, {FL_XI}", f"v_add_u32 v{V_FLG}, s40, v{V_FLG}"])])
    st.seq(v0s - 70, [poll_check(spins, die=True)])
    st.seq(v0s - 60, [poll_issue([f"v_and_b32 v{V_FLG}, 15, v{vl}", f"v_lshlrev_b32 v{V_FLG}, 2, v{V_FLG}",
                                  f"s_sub_u32 s40, 15, s{S_J}", "s_lshl_b32 s40, s40, 7", f"s_lshl_b32 s41, s{S_J}, 7",
                                  f"v_mov_b32 v{V_FLG+2}, s40", f"v_mov_b32 v{V_FLG+3}, s41", f"v_cmp_gt_u32 vcc, 32, v{vl}", "s_nop 1",
                                  f"v_cndmask_b32 v{V_FLG+2}, v{V_FLG+3}, v{V_FLG+2}, vcc", f"v_add_u32 v{V_FLG}, v{V_FLG}, v{V_FLG+2}",
                                  f"v_add_u32 v{V_FLG}, {FL_XN}, v{V_FLG}"])])
    st.seq(v0s + 8, [poll_check(spins)])
    pk = opts.get('paceK', 15)
    for k, (win, imm, Aa, Bb) in enumerate(Kit):
        g = v0s + 10 + pk * k
        st.seq(g, pack_pair(Aa, Bb, scale=True), step=0, latest=v0e)
        st.seq(g + pk + 1, store_item(k, win, imm, Aa, 'KVST'), latest=v1e)
    for k, (win, imm, Aa, Bb) in enumerate(V0it):
        st.seq(v1s + 10 + 6 * k, pack_pair(Aa, Bb), latest=v1e)
        st.seq(fs + 20 + opts.get('paceV', 40) * k, store_item(16 + k, win, imm, Aa, 'KVST'), latest=q0s - 1)
    for k, (win, imm, Aa, Bb) in enumerate(V1it):
        st.seq(fs + 10 + 6 * k, pack_pair(Aa, Bb), latest=q0s - 1)
        st.seq(q0s + 4 + 14 * k, store_item(24 + k, win, imm, Aa, 'KVST'), latest=q0e)
    offs = []
    for b in range(4):
        offs += [f"s_lshl_b32 s40, s{S_QB+b}, 14", f"v_add_u32 v{V_XOFF+b}, s40, v{V_ST}", f"s_mul_i32 s41, s{S_QB+b}, {86*512}",
                 f"v_lshlrev_b32 v{V_HOFF+b}, 3, v{vl}", f"v_add_u32 v{V_HOFF+b}, s41, v{V_HOFF+b}"]
    st.seq(v0s + 2, [tuple(offs[5*b:5*b+5]) for b in range(4)], step=2, latest=v0s + 40)
    def wtouch(w, ins):
        _lab[0] += 1; lab = f"L_pt{_lab[0]}"
        return tuple([f"s_cmp_eq_u32 s{S_W}, {w}", f"s_cbranch_scc0 {lab}"] + list(ins) + [f"{lab}:"])
    if opts.get('pfx', 1):
        st.seq(v0s + 12, [touch_setup_xn()])
        jobs = [(b, n) for n in range(4) for b in (True, False)]
        st.seq(v0s + opts.get('pfx0', 14), [wtouch(k % 4, touch_xn(*j)) for k, j in enumerate(jobs)], step=opts.get('pfxs', 12))
    if opts.get('pfq', 1):
        g = v0s + opts.get('pfq0', 130)
        st.seq(g, [touch_setup_f()])
        T = lambda v, b, o=0: I(f"global_load_dword v59, v{v}, {sr(b)} offset:{o}", tag='SF')
        st.seq(g + 4, [wtouch(0, [T(56, S_W1)]), wtouch(1, [T(58, S_W1)]), wtouch(2, [T(56, S_W3)]), wtouch(3, [T(58, S_W3)]),
                       wtouch(0, [T(57, S_WQ)]), wtouch(1, [T(57, S_WQ, 128)])], step=opts.get('pfqs', 16))
    for s in range(16):
        if s < 8: e = max(KG[(2, min(2 * s + 1, 15))] + 1, KG[(2, s + 1)] + 1); step = 7
        else: e = KG[(3, s - 8)] + 1; step = 5
        if s == 15: e = max(e, fs)
        st.seq(e, xn_loads(s), step=step, latest=KG[(3, s)] - 8)
    for s in range(16):
        st.at(KG[(3, s)] - 1, W(vm=[('XN', s)]))
    tog = [f"v_xor_b32 v{proj.V_TR+o+cb}, s{S_ODD + (1 if cb == 1 else 0)}, v{proj.V_TR+o+cb}" for o in (0, 4) for cb in range(3)]
    for first_gap in (fs, q0s):
        fi = [k for k, f in enumerate(ps.frags) if f[2] == first_gap][0]
        st.at(ps.frags[fi - 3][2], tog)
    st.floating('ep', q0s + 8, ffn_epilogue(0), latest=q0e)
    st.floating('ep', q0s + 8, ffn_epilogue(1))
    st.floating('ep', q0s + 8, ffn_epilogue(2))
    st.floating('ep', KG[(5, 4)] + 8, q_epilogue(0, accQ0))
    stq0 = ps.frags[[fi for fi, f in enumerate(ps.frags) if f[2] >= q0s][0]][0] // 8
    g = barrier_gap(stq0 + opts.get('kv_arr', 2))
    st.gaps[g].insert(0, W(vm=['KVST']))
    st.seq(g + 1, [set_flag_group('kv')])
    st.seq(KG[(5, opts.get('kvchk', 8))] - 60, [poll_issue([f"v_and_b32 v{V_FLG}, 7, v{vl}", f"v_lshlrev_b32 v{V_FLG}, 2, v{V_FLG}", f"s_lshl_b32 s40, s{S_H}, 7",
                                                             f"v_add_u32 v{V_FLG}, s40, v{V_FLG}"])])
    gchk = KG[(5, opts.get('kvchk', 8))]
    st.seq(gchk, [poll_check(spins)])
    for k, (pre, d) in enumerate(kv_stage_groups(0, 0, 'KV0')):
        st.dma(gchk + 12 + 6 * k, pre, d)
    if pro or opts.get('stamp_ops'): pass
    elif stamp and opts.get('stamp_stage') is not None:
        for stg in opts['stamp_stage']:
            g = barrier_gap(stg)
            st.gaps[g].insert(0, I(sp.instr()))
            k = [i for i, x in enumerate(st.gaps[g]) if x.kind == 'barrier'][0]
            st.gaps[g].insert(k + 1, I(sp.instr()))
    elif stamp and opts.get('sset', 'proj') == 'proj':
        for ci in range(6): st.at(CG[ci][1] - 1, sp.instr())
    body = st.layout()
    if stamp and opts.get('stamp_ops'):
        kind, idxs = opts['stamp_ops']
        nb = []; c = 0
        for x in body:
            m = (kind == 'xn' and x.kind == 'vload' and isinstance(x.tag, tuple) and x.tag[0] == 'XN') or (kind == 'st' and x.kind == 'vstore' and x.tag == 'KVST') or (kind == 'dma' and x.kind == 'dma')
            if m and c in idxs: nb += [I(sp.instr()), x, I(sp.instr())]
            else: nb.append(x)
            if m: c += 1
        body = nb
    pos = {id(x): k for k, x in enumerate(body)}
    last_wr = {}
    for k, x in enumerate(body):
        if x.kind == 'vstore' and x.tag == 'KVST':
            for r in x.rd:
                if r[0] == 'v' and int(r[1:]) >= 64:
                    w = last_wr.get(r)
                    assert w is not None and body[w].op == 'v_cvt_pk_bf16_f32', ("store before pack", x.text, r, body[w].text if w is not None else None)
        if (x.kind == 'vload' and isinstance(x.tag, tuple) and x.tag[0] == 'XN') or (x.kind == 'vstore' and x.tag in ('HST', 'HSTC')):
            v = x.rd[0]
            assert v in last_wr and body[last_wr[v]].op == 'v_add_u32', ("offset register not set up", x.text)
        if x.kind == 'vload' and isinstance(x.tag, tuple) and x.tag[0] == 'XN':
            a = [r for r in x.rd if r[0] == 's'][0]
            assert body[last_wr[a]].tag == ('own', x.tag[1]), ("xn address clobbered", x.text, body[last_wr[a]].text)
        for r in x.wr: last_wr[r] = k
    abl = opts.get('abl', ())
    if 'nokvst' in abl: body = [i for i in body if not (i.kind == 'vstore' and i.tag == 'KVST')]
    if 'noxn' in abl: body = [i for i in body if not (i.kind == 'vload' and isinstance(i.tag, tuple) and i.tag[0] == 'XN')]
    if 'nohst' in abl: body = [i for i in body if not (i.kind == 'vstore' and i.tag in ('HST', 'HSTC'))]
    p.ext(body)
    p.e("s_nop 7")
    p.ext(q_epilogue(1, accQ1))
    p.ext([W(vm=True, lg=True)])
    p.e("s_barrier")
    for pre, d in kv_stage_groups(65536, -(A.KVBUF0 - 32768), 'KV1'): emit_dma(pre, d)
    p.ext(set_flag_group('h'))
    p.e(f"""
    s_add_u32 s{A.S_KVG}, s{A.S_KVG}, {2*65536}
    s_addc_u32 s{A.S_KVG+1}, s{A.S_KVG+1}, 0
    v_add_u32 v{A.V_KVR}, {A.KVBUF0}, v{A.V_L16}
    s_sub_u32 s{A.S_CNT}, 14, s{S_J}
    """)
    K, V = A.kv_reads(0, 0)
    p.ext(K); p.ext(V)
    for r in range(128, 256): p.e(f"v_mov_b32 v{r}, 0")
    for b in range(4): p.e(f"v_mov_b32 v{A.V_L+b}, 0")
    p.e(f"""
    v_mov_b32 v{A.V_BIG}, {f32hex(-1e30)}
    v_and_b32 v{A.V_T}, 15, v{A.V_LANE}
    v_lshrrev_b32 v{A.V_T+1}, 4, v{A.V_LANE}
    v_lshlrev_b32 v{A.V_T+1}, 2, v{A.V_T+1}
    """)
    for r in range(4):
        p.e(f"v_add_u32 v{A.V_T+2}, {r}, v{A.V_T+1}\nv_cmp_le_u32 s[{A.S_MASK+2*r}:{A.S_MASK+2*r+1}], v{A.V_T+2}, v{A.V_T}")
    p.ext([W(lg=[('K', 0)])])
    for b in range(4):
        d = vr(A.V_S + 4*b)
        for t in range(4):
            p.e(f"{MF} {d}, {ar(A.KF(0,0,t))}, {ar(A.QF(b,t))}, {'0' if t == 0 else d}")
    p.e("s_nop 7")
    for b in range(4):
        s0 = A.V_S + 4*b
        p.e(f"v_max3_f32 v{A.V_NEGM+b}, v{s0}, v{s0+1}, v{s0+2}\nv_max_f32 v{A.V_NEGM+b}, v{A.V_NEGM+b}, v{s0+3}")
    for b in range(4): reduce_g(p, A.V_NEGM+b, A.V_T, "v_max_f32")
    for b in range(4):
        p.e(f"v_sub_f32 v{A.V_NEGM+b}, 0, v{A.V_NEGM+b}")
        for r in range(8): p.e(f"v_mov_b32 v{A.CI(b,0)+r}, v{A.V_NEGM+b}")
    def pipe_init(q):
        s1 = A.Sreg(1, 1)
        q.e(f"v_mov_b32 v{s1}, 0")
        for r in range(1, 4): q.e(f"v_mov_b32 v{s1+r}, v{A.V_BIG}")
        q.e(f"v_mov_b32 v{A.Preg(1)}, 0\nv_mov_b32 v{A.Preg(1)+1}, 0\ns_nop 1")
    pipe_init(p)
    fine = opts.get('stamp_stage') is not None or bool(pro) or bool(opts.get('stamp_ops'))
    if stamp and not fine: p.e(sp.instr())
    auto_waits(p.ins)
    mk_spl = lambda: A.stage_body(2, None, "Lsp", sc_kv=SC)
    dpl = A.resolve_loop(A.stage_body(4, None, "Ldp", sc_kv=SC))
    ddg = A.resolve_loop(A.stage_body(4, (2, 3), "Ldd", sc_kv=SC))
    spl = A.resolve_loop(mk_spl())
    sdg = A.resolve_loop(A.stage_body(2, (0, 1), "Lsd", prefetch=False, last=True), prev=mk_spl())
    for nm, a, b in (('dpl', dpl, dpl), ('ddg', dpl, ddg), ('spl', spl, spl), ('spl2', ddg, spl), ('sdg', spl, sdg), ('sdg2', ddg, sdg)):
        pr = check_hazards(a + b, nm) + check_waits(a + b, nm) + check_m0(b, nm)
        if pr: print("\n".join(pr[:10])); raise SystemExit("hazards in " + nm)
    frozen = lambda L: [I(i.text) if i.kind == 'wait' else i for i in L]
    m = Prog()
    m.e(f"s_mov_b32 s{S_LOOP}, s{S_J}\ns_cmp_eq_u32 s{S_LOOP}, 0\ns_cbranch_scc1 L_dual_diag\n.p2align 5\nL_dual_loop:")
    m.ext(frozen(dpl))
    m.e(f"s_sub_u32 s{S_LOOP}, s{S_LOOP}, 1\ns_cmp_lg_u32 s{S_LOOP}, 0\ns_cbranch_scc1 L_dual_loop\nL_dual_diag:")
    m.ext(frozen(ddg))
    m.ext(frozen(auto_waits(A.tail(4))))
    def l_finish(q, slots):
        q.e("s_nop 7")
        for b in slots: reduce_g(q, A.V_L+b, A.V_T, "v_add_f32")
        for b in slots: q.e(f"v_rcp_f32 v{A.V_L+b}, v{A.V_L+b}")
        q.e("s_nop 0")
    l_finish(m, (2, 3))
    ctx_epilogue(m, (2, 3), 'CXA')
    pipe_init(m)
    if stamp and not fine: m.e(sp.instr())
    m.e(f"s_lshl_b32 s{S_LOOP}, s{S_J}, 1\ns_sub_u32 s{S_LOOP}, 14, s{S_LOOP}\ns_cmp_eq_u32 s{S_LOOP}, 0\ns_cbranch_scc1 L_single_diag\n.p2align 5\nL_single_loop:")
    m.ext(frozen(spl))
    m.e(f"s_sub_u32 s{S_LOOP}, s{S_LOOP}, 1\ns_cmp_lg_u32 s{S_LOOP}, 0\ns_cbranch_scc1 L_single_loop\nL_single_diag:")
    if with_t4 and opts.get('pft4', 1):
        m.ext(t4_touch_setup())
        for k, grp in enumerate(t4_touches()):
            _lab[0] += 1; lab = f"L_tt{_lab[0]}"
            m.e(f"s_cmp_eq_u32 s{S_W}, {k % 4}\ns_cbranch_scc0 {lab}"); m.ext(grp); m.e(f"{lab}:")
    m.ext(A.mask_hook((0, 1), 0, "Lsd_m0"))
    m.ext(frozen(sdg))
    m.ext(frozen(auto_waits(A.tail(2))))
    if stamp and not fine: m.e(sp.instr())
    l_finish(m, (0, 1))
    ctx_epilogue(m, (0, 1), 'CXB')
    m.e("s_waitcnt vmcnt(0)\ns_barrier")
    m.ext(set_flag_group('cx', 0)); m.ext(set_flag_group('cx', 1))
    if stamp and not fine: m.e(sp.instr())
    if with_t4:
        import t4v2
        t4v2.emit(m, sp if (stamp and not fine and opts.get('sset') == 't4') else None, spins, opts)
    m.e("s_waitcnt vmcnt(0)")
    if stamp:
        if not fine: m.e(sp.instr())
        sp.dump(m, 2)
    m.e("L_end:\ns_endpgm")
    m.ext(spins)
    auto_waits(m.ins)
    pp, lo, hi = check_ptrs(p.ins, name)
    pp2, _, _ = check_ptrs(m.ins, name, lo, hi)
    if pp or pp2: print("\n".join((pp + pp2)[:20])); raise SystemExit("pointer problems")
    if not stamp:
        pr = check_hazards(p.ins, name) + check_waits(p.ins, name) + check_scc(p.ins, name) + check_m0(p.ins, name)
        pr += check_hazards(p.ins[-300:] + m.ins, 'junctions')
        if pr: print("\n".join(pr[:20])); raise SystemExit(f"{len(pr)} problems")
    return kernel_open(name) + p.text() + m.text(), kernel_desc(name, 512, 256)

if __name__ == "__main__":
    import sys, json
    from build import assemble_file
    from k_t4 import gen_t4
    stamp = 'stamp' in sys.argv
    if 'cyc' in sys.argv: Stamps.cyc = True
    opts = {}
    for a in sys.argv[2:]:
        if a.startswith('{'): opts = json.loads(a)
    if opts.get('t4', 1):
        nm = NAME + "_kernel"
        a, b = gen_fused(nm, stamp=stamp, with_t4=True, opts=opts)
        txt = assemble_file([(nm, a, b, 256, 256, 163840)])
    else:
        a, b = gen_fused('fused_kernel', stamp=stamp, opts=opts)
        g, h = gen_t4('t4_kernel', stamp=False)
        txt = assemble_file([('fused_kernel', a, b, 256, 256, 163840), ('t4_kernel', g, h, 256, 256, 65536)])
    open(sys.argv[1], 'w').write(txt); print(len(txt))
```
